```python
import torch

def _softmax(x, axis=-1):
    return torch.softmax(x, dim=axis)
def _gelu(x):
    return torch.nn.functional.gelu(x, approximate="tanh")
def _silu(x):
    return torch.nn.functional.silu(x)
def _sigmoid(x):
    return torch.sigmoid(x)
def _layernorm(x, axis=-1, eps=1e-5):
    m = x.mean(dim=axis, keepdim=True)
    v = x.var(dim=axis, keepdim=True, unbiased=False)
    return (x - m) / torch.sqrt(v + eps)
def _scatter_add(tgt, idx, src, axis=0):
    return tgt.clone().index_add_(axis, idx, src)
def _segment_sum(src, seg, n):
    out = torch.zeros((n,) + src.shape[1:], dtype=src.dtype)
    return out.index_add_(0, seg, src)
def _pad(x, pw):
    flat = tuple(v for pair in reversed(pw) for v in pair)
    return torch.nn.functional.pad(x, flat)

kernel_name = 'gated_mix__sliding_block_cached__glu_gated_swiglu__decode'

def setup_inputs():

    _w = (lambda a: (lambda t: t.to(torch.bfloat16) if t.is_floating_point() else t)(torch.as_tensor(a)))
    def _A_setup():
        B, Sq, D = 8, 1, 512
        Hq, Hkv, Sk, Dh = 32, 8, 4096, 128
        assert Hq % Hkv == 0, (Hq, Hkv)
        return {
            "x": _w((lambda *s: torch.randn(*s, dtype=torch.bfloat16) * 0.05)(B, Sq, D)),
            "k_cache": _w((lambda *s: torch.randn(*s, dtype=torch.bfloat16) * 3.2)(B, Hkv, Sk, Dh)),
            "v_cache": _w((lambda *s: torch.randn(*s, dtype=torch.bfloat16) * 0.05)(B, Hkv, Sk, Dh)),
            "wq": _w((lambda *s: torch.randn(*s, dtype=torch.bfloat16) * 3.2)(D, Hq * Dh) * (D ** -0.5)),
            "wo": _w((lambda *s: torch.randn(*s, dtype=torch.bfloat16) * 0.05)(Hq * Dh, D) * ((Hq * Dh) ** -0.5)),
        }
    _A_in = _A_setup()

    def _B_setup():
        B, S, D, F = 8, 1, 512, 1792
        return {
            "x": _w((lambda *s: torch.randn(*s, dtype=torch.bfloat16) * 0.05)(B, S, D)),
            "w1": _w((lambda *s: torch.randn(*s, dtype=torch.bfloat16) * 0.2)(D, F) * (2.0 / D) ** 0.5),
            "w3": _w((lambda *s: torch.randn(*s, dtype=torch.bfloat16) * 0.2)(D, F) * (2.0 / D) ** 0.5),
            "w2": _w((lambda *s: torch.randn(*s, dtype=torch.bfloat16) * 0.2)(F, D) * (2.0 / F) ** 0.5),
        }
    _B_in = _B_setup()

    return {
        "A_x": _A_in["x"],
        "A_k_cache": _A_in["k_cache"],
        "A_v_cache": _A_in["v_cache"],
        "A_wq": _A_in["wq"],
        "A_wo": _A_in["wo"],
        "B_x": _B_in["x"],
        "B_w1": _B_in["w1"],
        "B_w3": _B_in["w3"],
        "B_w2": _B_in["w2"],
        "gate_w": _w((lambda *s: torch.randn(*s, dtype=torch.bfloat16) * 0.05)(512) * 16.0),
    }

def reference(A_x, A_k_cache, A_v_cache, A_wq, A_wo, B_x, B_w1, B_w3, B_w2, gate_w):
    def _A_ref(x, k_cache, v_cache, wq, wo):
        B, Sq, D = x.shape
        Hq, Dh = 32, 128
        Hkv, Sk = k_cache.shape[1], k_cache.shape[2]
        W = min(4096, max(256, Sk // 4))
        rep = Hq // Hkv
        q = (lambda x, *d: x.permute(*d))((x @ wq).reshape(B, Sq, Hq, Dh), 0, 2, 1, 3)
        k = (lambda x, n, axis: torch.repeat_interleave(x, n, dim=axis))(k_cache[:, :, Sk - W:, :], rep, axis=1)
        v = (lambda x, n, axis: torch.repeat_interleave(x, n, dim=axis))(v_cache[:, :, Sk - W:, :], rep, axis=1)
        scores = torch.einsum("bhqd,bhkd->bhqk", q, k) * (Dh ** -0.5)
        p = _softmax(scores, axis=-1)
        o = torch.einsum("bhqk,bhkd->bhqd", p, v)
        return (lambda x, *d: x.permute(*d))(o, 0, 2, 1, 3).reshape(B, Sq, Hq * Dh) @ wo

    def _B_ref(x, w1, w3, w2):
        gate = torch.einsum("bsd,df->bsf", x, w1)
        up = torch.einsum("bsd,df->bsf", x, w3)
        h = _silu(gate) * up
        out = torch.einsum("bsf,fd->bsd", h, w2)
        return out

    x = A_x
    g = _sigmoid((x * gate_w).sum(-1, keepdims=True))
    a = _A_ref(x, A_k_cache, A_v_cache, A_wq, A_wo)
    b = _B_ref(x, B_w1, B_w3, B_w2)
    return g * a + (1 - g) * b
```

```python
import re

TRANS = ("v_exp_f32", "v_log_f32", "v_rcp_f32", "v_rsq_f32", "v_sqrt_f32", "v_sin_f32", "v_cos_f32")

def regs_of(tok):
    tok = tok.strip()
    tok = tok.lstrip("-")
    m = re.fullmatch(r"abs\((.*)\)", tok) or re.fullmatch(r"\|(.*)\|", tok)
    if m: tok = m.group(1)
    m = re.fullmatch(r"([vsa])(\d+)", tok)
    if m: return {(m.group(1), int(m.group(2)))}
    m = re.fullmatch(r"([vsa])\[(\d+):(\d+)\]", tok)
    if m: return {(m.group(1), i) for i in range(int(m.group(2)), int(m.group(3)) + 1)}
    if tok == "vcc": return {("s", 106), ("s", 107)}
    if tok == "vcc_lo": return {("s", 106)}
    if tok == "vcc_hi": return {("s", 107)}
    if tok == "exec": return {("s", 126), ("s", 127)}
    if tok == "m0": return {("s", 124)}
    return set()

class I:
    def __init__(self, text):
        self.text = text
        t = text.split(";")[0].strip()
        self.label = t[:-1] if t.endswith(":") else None
        self.directive = t.startswith(".") and not self.label
        self.op = ""; self.ops = []; self.mods = ""
        self.dst = set(); self.src = set(); self.srcC = set(); self.srcAB = set(); self.data = set()
        if self.label or self.directive or not t:
            self.kind = "none"; return
        parts = t.split(None, 1)
        self.op = parts[0]
        rest = parts[1] if len(parts) > 1 else ""
        toks = [x.strip() for x in re.split(r",(?![^\[]*\])", rest)] if rest else []
        if toks:
            last = toks[-1].split()
            toks[-1] = last[0] if last else ""
            self.mods = " ".join(last[1:])
        self.ops = toks
        op = self.op
        R = [regs_of(x) for x in toks]
        U = lambda l: set().union(*l) if l else set()
        if op.startswith("v_mfma"):
            self.kind = "mfma"; self.dst = R[0]; self.srcAB = R[1] | R[2]; self.srcC = R[3]; self.src = self.srcAB | self.srcC
            self.passes = 8 if "32x32" in op else 4
        elif op.startswith("v_"):
            self.kind = "valu"
            self.dst = R[0]; self.src = U(R[1:])
            if op.startswith("v_permlane") and "swap" in op: self.dst = R[0] | R[1]; self.src = R[0] | R[1]
            if op.startswith(("v_fmac", "v_dot2c", "v_writelane")) or "_dpp" in op or "_sdwa" in op: self.src |= R[0]
            if op.startswith(("v_add_co", "v_sub_co", "v_addc_co")): self.dst = R[0] | R[1]; self.src = U(R[2:])
            if op.startswith("v_cmpx"): self.dst |= regs_of("exec")
        elif op.startswith("ds_"):
            self.kind = "ds"
            if op.startswith(("ds_read", "ds_bpermute", "ds_permute", "ds_swizzle")) or "_rtn" in op: self.dst = R[0]; self.src = U(R[1:])
            else: self.src = U(R)
        elif op.startswith("buffer_") or op.startswith("global_"):
            self.kind = "vmem"
            self.lds = " lds" in (" " + self.mods)
            if "load" in op and not self.lds: self.dst = R[0]; self.src = U(R[1:])
            else: self.src = U(R)
            if "store" in op and ("x4" in op or "x3" in op):
                self.data = R[0] if op.startswith("buffer_") else R[1]
        elif op.startswith("s_"):
            self.kind = "salu"
            if op.startswith(("s_cmp", "s_bitcmp", "s_waitcnt", "s_nop", "s_branch", "s_cbranch", "s_barrier", "s_endpgm", "s_sleep", "s_setprio")):
                self.src = U(R)
            else:
                self.dst = R[0] if R else set(); self.src = U(R[1:])
                if "saveexec" in op: self.dst |= regs_of("exec")
        else:
            raise ValueError("unknown instr: " + text)
    def states(self):
        if self.kind == "none": return 0
        if self.op == "s_nop": return int(self.ops[0], 0) + 1
        return 1

def vg(s): return {r for r in s if r[0] in "va"}
def sg(s): return {r for r in s if r[0] == "s"}

def need(p, c):
    n = 0
    if p.kind == "valu":
        pv, ps = vg(p.dst), sg(p.dst)
        if c.kind == "mfma" and pv & c.src: n = max(n, 2)
        if c.kind == "valu":
            if "_dpp" in c.op and pv & c.src: n = max(n, 2)
            if c.op.startswith("v_permlane") and pv & c.src: n = max(n, 2)
            if c.op.startswith(("v_readlane", "v_readfirstlane")) and pv & c.src: n = max(n, 1)
            if p.op.startswith(TRANS) and pv & c.src: n = max(n, 1)
            if ("_sdwa" in p.op or "op_sel" in p.mods) and pv & (c.src | c.dst): n = max(n, 1)
            if ps & c.src: n = max(n, 4 if c.op.startswith(("v_readlane", "v_writelane")) else 2)
            if ("s", 126) in ps: n = max(n, 5 if "_dpp" in c.op else 4 if c.op.startswith(("v_readlane", "v_readfirstlane", "v_writelane", "v_permlane")) else 0)
        if c.kind in ("ds", "vmem") and p.op.startswith(TRANS) and pv & c.src: n = max(n, 1)
        if c.kind == "vmem" and ps & c.src: n = max(n, 5)
        if c.kind == "salu" and ps & c.src: n = max(n, 1)
        if c.kind == "salu" and c.op.startswith("s_cbranch_vcc") and ("s", 106) in ps: n = max(n, 1)
        if c.kind == "mfma" and ("s", 126) in ps: n = max(n, 4)
    if p.kind == "mfma":
        big = {4: 8, 8: 12}[p.passes]; part = {4: 6, 8: 10}[p.passes]; war = {4: 3, 8: 7}[p.passes]
        if c.kind == "mfma":
            if p.dst & c.srcAB: n = max(n, big)
            if p.dst & c.srcC and not (p.dst == c.srcC and p.passes == c.passes): n = max(n, part)
            if p.dst & c.dst and not (p.dst == c.srcC): n = max(n, big)
        elif c.kind in ("valu", "ds", "vmem"):
            if p.dst & (c.src | c.dst): n = max(n, big)
        if c.kind == "valu" and p.srcC & c.dst: n = max(n, war)
    if p.kind == "salu":
        if ("s", 124) in p.dst and ((c.kind == "vmem" and c.lds) or (c.kind == "valu" and ("s", 124) in c.src)): n = max(n, 1)
    if p.kind == "vmem" and p.data:
        if p.data & c.dst: n = max(n, 2 if c.kind in ("valu", "mfma") else 1)
    return n

def fix(lines, verbose=False):
    ins = [I(l) for l in lines]
    for _ in range(3000):
        labels = {x.label: i for i, x in enumerate(ins) if x.label}
        br = {}
        for i, x in enumerate(ins):
            if x.op.startswith(("s_branch", "s_cbranch")):
                br.setdefault(labels[x.ops[0]], []).append(i)
        def preds(i):
            out = list(br.get(i, []))
            if i > 0 and ins[i-1].op not in ("s_branch", "s_endpgm"): out.append(i - 1)
            return out
        changed = False
        for i, c in enumerate(ins):
            if c.kind == "none" or c.op == "s_nop": continue
            deficit = 0; why = None
            seen = {}
            stack = [(j, 0) for j in preds(i)]
            while stack:
                j, d = stack.pop()
                if d >= 13 or seen.get(j, 99) <= d: continue
                seen[j] = d
                p = ins[j]
                if p.kind != "none":
                    k = need(p, c) - d
                    if k > deficit: deficit = k; why = p.text
                for q in preds(j): stack.append((q, d + p.states()))
            if deficit > 0:
                if verbose: print(f"nop {deficit} before '{c.text}' due to '{why}'")
                ins.insert(i, I(f"s_nop {deficit-1}"))
                changed = True
                break
        if not changed: return [x.text for x in ins]
    raise RuntimeError("hazard pass did not converge")
```

```python
import sys, struct, math
from hazard import fix

NAME = "gated_mix__sliding_block_cached__glu_gated_swiglu__decode"
HEADER = open("cdna_kernels/%s.s.ref" % NAME).read().split("; Override launch geometry")[0]

KOFF, VOFF, TOFF, WOFF, W2OFF, MISC = 0, 65536, 98304, 131072, 147456, 155648
XOFF, XROW = WOFF, 1056
GWOFF = XOFF + 8 * XROW
F_PROG, F_S, F_M, F_P = 0, 256, 512, 768
M_G, M_MAX, M_SUM, M_P, M_H, M_O = 1024, 1088, 1152, 1280, 3328, 4480
HROW, OROW = 144, 272
LDS_BYTES = 163840
WS_S1, WS_OA, WS_LA, WS_FA, WS_SIZE = 0x1000, 0x40000, 0xC0000, 0x100000, 0x200000
S1ROW = 1920 * 16
STAMP = 0x1000000
N_S1, N_K, N_V, N_W = 41, 64, 64, 24
P_S1 = N_S1; P_K0 = N_S1; P_V0 = N_S1 + N_K; P_ALL = N_S1 + N_K + N_V + N_W
def f32(x): return "0x%08x" % struct.unpack("<I", struct.pack("<f", x))[0]
LOG2E = 1.4426950408889634
CSC = LOG2E / math.sqrt(128.0)
TAGC_LO, TAGC_HI = 0x7F4A7C15, 0x9E3779B9
POLL_MAX = 400000
CODE_PF = 10240

class G:
    def __init__(self, thr=28, stamps=False, nt_w=True):
        self.L = []; self.nl = 0; self.thr = thr; self.stamps = stamps; self.nst = 0; self.nt_w = nt_w
    def __call__(self, s):
        for line in s.split("\n"):
            line = line.strip()
            if line: self.L.append(line)
    def lab(self, p="L"):
        self.nl += 1; return f"{p}_{self.nl}"
    def srd(self, d, b, n):
        self(f"s_mov_b32 s{d}, s{b}\ns_mov_b32 s{d+1}, s{b+1}\ns_mov_b32 s{d+2}, {n}\ns_mov_b32 s{d+3}, 0x20000")
    def stamp(self, i):
        if self.stamps: self(f"s_memrealtime s[{70+2*i}:{71+2*i}]")
    def dump_stamps(self, n):
        if not self.stamps: return
        A = self
        A("s_waitcnt lgkmcnt(0)\ns_mov_b64 exec, -1")
        A(f"s_mov_b32 s64, s28\ns_mov_b32 s65, s29\ns_mov_b32 s66, 0x10000000\ns_mov_b32 s67, 0x20000")
        A(f"s_lshl_b32 s68, s2, 3\ns_add_u32 s68, s68, s3\ns_lshl_b32 s68, s68, 6\ns_add_u32 s68, s68, {STAMP}")
        for i in range(n): A(f"v_writelane_b32 v250, s{70+2*i}, {i}")
        A(f"v_lshlrev_b32 v251, 2, v0\ns_mov_b64 exec, {(1<<n)-1}\nbuffer_store_dword v250, v251, s[64:67], s68 offen")

    def build(self):
        A = self; thr = self.thr
        A(f"s_cmp_ge_u32 s2, 256\ns_cbranch_scc1 L_end")
        A.stamp(0)
        A("s_load_dwordx16 s[4:19], s[0:1], 0\ns_load_dwordx8 s[20:27], s[0:1], 64\ns_load_dwordx2 s[28:29], s[0:1], 96")
        A("s_getpc_b64 s[38:39]\nv_lshlrev_b32 v1, 5, v0\nglobal_load_dword v255, v1, s[38:39]")
        A("v_lshrrev_b32 v1, 6, v0\nv_and_b32 v0, 63, v0\nv_readfirstlane_b32 s3, v1")
        A("s_and_b32 s30, s2, 7\ns_lshr_b32 s31, s2, 3")
        A(f"v_lshlrev_b32 v2, 4, v0")
        A("s_cmp_lg_u32 s3, 0\ns_cbranch_scc0 L_loader\ns_barrier\ns_branch L_compute")
        self.loader()
        self.compute()
        A("L_end:\ns_endpgm")

    def loader(self):
        A = self; thr = self.thr; W = thr - 4
        nt = " nt"; ntw = " nt" if self.nt_w else ""
        A("L_loader:\ns_setprio 3")
        A(f"v_mov_b32 v4, 0\nv_mov_b32 v5, 0\nv_mov_b32 v6, 0\nv_mov_b32 v7, 0\nv_add_u32 v3, {MISC}, v2\nds_write_b128 v3, v[4:7]")
        A("s_lshl_b32 s33, s30, 4\ns_add_u32 s33, s33, s31")
        A("s_lshr_b32 s35, s30, 1\ns_mul_i32 s35, s35, 14\ns_add_u32 s35, s35, s31\ns_sub_u32 s35, s35, 16")
        A("s_movk_i32 s32, 0x2000\ns_mov_b32 s34, 0x400000\ns_cmp_lt_u32 s31, 16")
        A(f"s_cselect_b32 s33, s33, s35\ns_cselect_b32 s32, s32, 3584\ns_cselect_b32 s34, s34, {1792*1024}\ns_lshl_b32 s33, s33, 6")
        A("s_cmp_lt_u32 s31, 30\ns_cselect_b32 s34, s34, 0")
        A("v_lshrrev_b32 v12, 2, v0\nv_mul_lo_u32 v8, v12, s32\nv_lshrrev_b32 v12, 4, v0\nv_and_b32 v13, 2, v12\nv_and_b32 v14, 3, v0\nv_xor_b32 v13, v13, v14\nv_lshl_add_u32 v8, v13, 4, v8")
        A("s_lshl_b32 s36, s32, 4\ns_sub_u32 s36, s36, 1024\nv_add_u32 v9, s36, v8\nv_add_u32 v10, s36, v9\nv_add_u32 v11, s36, v10")
        A(f"v_lshlrev_b32 v3, 2, v0\nv_add_u32 v3, {MISC}, v3\nv_mov_b32 v4, {9 - W}")
        A("s_waitcnt lgkmcnt(0)\ns_barrier")
        A.srd(40, 4, 8192)
        for b in range(8):
            A(f"s_mov_b32 m0, {XOFF + b*32 + (b//4)*4096}" + ("\ns_movk_i32 s37, 0x1000" if b == 0 else ""))
            A(f"buffer_load_dwordx4 v2, s[40:43], {'s37' if b >= 4 else '0'} offen offset:{(b%4)*1024} lds")
        A.srd(44, 22, 1024)
        A(f"s_mov_b32 m0, {GWOFF}\ns_bitcmp1_b32 s30, 0\nbuffer_load_dwordx4 v2, s[44:47], 0 offen lds")
        A("s_cselect_b32 s44, s18, s16\ns_cselect_b32 s45, s19, s17\ns_cmp_lt_u32 s31, 16\ns_cselect_b32 s44, s10, s44\ns_cselect_b32 s45, s11, s45\ns_mov_b32 s46, s34")
        def loop(srd, voffs, niter, m0base, sreg, step, flags):
            l = A.lab("L_ld")
            A(f"s_mov_b32 s37, {m0base}")
            A(f"{l}:\ns_waitcnt vmcnt({W})\nds_write_b32 v3, v4 offset:{F_PROG}\ns_mov_b32 m0, s37\ns_add_u32 s37, s37, 4096")
            for j in range(4):
                A(f"buffer_load_dwordx4 v{voffs[j]}, s[{srd}:{srd+3}], s{sreg} offen offset:{j*1024}{flags} lds")
            A(f"v_add_u32 v4, 4, v4\ns_add_u32 s{sreg}, s{sreg}, {step}\ns_cmp_lt_u32 s37, {m0base + niter*4096}\ns_cbranch_scc1 {l}")
        A("s_lshl_b32 s36, s32, 6")
        A.stamp(1)
        loop(44, [8, 9, 10, 11], 8, TOFF, 33, "s36", ntw)
        A.stamp(2)
        A.srd(40, 6, 0x4000000)
        A("s_lshr_b32 s32, s31, 2\ns_lshl_b32 s32, s32, 3\ns_add_u32 s32, s32, s30\ns_lshl_b32 s32, s32, 20\ns_and_b32 s33, s31, 3\ns_lshl_b32 s33, s33, 16\ns_add_u32 s32, s32, s33\ns_add_u32 s32, s32, 0xC0000\ns_mov_b32 s33, s32")
        A("v_and_b32 v13, 15, v0\nv_lshlrev_b32 v14, 8, v12")
        for j in range(4):
            A(f"v_add_u32 v15, {4*j}, v12\nv_xor_b32 v15, v15, v13\nv_lshl_add_u32 v{8+j}, v15, 4, v14")
        loop(40, [8, 9, 10, 11], 16, KOFF, 33, 4096, nt)
        A.stamp(3)
        A.srd(44, 8, 0x4000000)
        for j in range(2):
            A(f"v_add_u32 v15, {4*j}, v12\nv_lshlrev_b32 v15, 1, v15\nv_xor_b32 v15, v15, v13\nv_lshl_add_u32 v{8+j}, v15, 4, v14")
        loop(44, [8, 9, 8, 9], 8, VOFF, 32, 4096, nt)
        l = A.lab("L_ws")
        A(f"{l}:\nds_read_b32 v5, v3 offset:{F_S}\ns_waitcnt lgkmcnt(0)\nv_readfirstlane_b32 s37, v5\ns_cmp_ge_u32 s37, 3\ns_cbranch_scc0 {l}")
        loop(44, [8, 9, 8, 9], 8, VOFF + 32768, 32, 4096, nt)
        A.stamp(4)
        A.srd(40, 12, 0x400000)
        A.srd(44, 20, 1792*1024)
        A("s_lshl_b32 s32, s30, 2\ns_and_b32 s33, s31, 3\ns_add_u32 s32, s32, s33\ns_lshr_b32 s33, s31, 2\ns_lshl_b32 s33, s33, 7")
        A(f"s_mul_i32 s34, s32, {56*1024}\ns_add_u32 s34, s34, s33\ns_lshl_b32 s32, s32, 17\ns_add_u32 s32, s32, s33")
        A("v_lshrrev_b32 v14, 3, v0\nv_lshlrev_b32 v14, 10, v14\nv_and_b32 v13, 7, v0\nv_and_b32 v15, 1, v12\nv_lshlrev_b32 v15, 1, v15\nv_xor_b32 v13, v13, v15")
        A("v_lshl_add_u32 v8, v13, 4, v14\nv_xor_b32 v9, 64, v8\nv_add_u32 v9, 7168, v9\nv_add_u32 v10, 14336, v8\nv_add_u32 v11, 14336, v9")
        loop(40, [8, 9, 10, 11], 4, WOFF, 32, 32768, ntw)
        loop(44, [8, 9, 10, 11], 2, W2OFF, 34, 32768, ntw)
        A.stamp(5)
        w = W
        while True:
            A(f"s_waitcnt vmcnt({w})\nds_write_b32 v3, v4 offset:{F_PROG}")
            if w == 0: break
            nw = max(0, min(w - 4, N_W) if w > N_W else 0)
            A(f"v_add_u32 v4, {w - nw}, v4")
            w = nw
        A.stamp(6)
        A.dump_stamps(7)
        A("s_endpgm")

    def wait_prog(self, n):
        A = self; l = A.lab("L_wp"); d = A.lab("L_wd")
        A(f"s_cmp_ge_i32 s50, {n}\ns_cbranch_scc1 {d}")
        A(f"{l}:\nds_read_b32 v10, v3 offset:{F_PROG}\ns_waitcnt lgkmcnt(0)\nv_readfirstlane_b32 s50, v10\ns_cmp_ge_i32 s50, {n}\ns_cbranch_scc0 {l}\n{d}:")
    def signal(self, off):
        self(f"s_waitcnt lgkmcnt(0)\nds_add_u32 v3, v9 offset:{off}")
    def wait_cnt(self, off, n):
        A = self; l = A.lab("L_wc")
        A(f"{l}:\nds_read_b32 v10, v3 offset:{off}\ns_waitcnt lgkmcnt(0)\nv_readfirstlane_b32 s51, v10\ns_cmp_ge_u32 s51, {n}\ns_cbranch_scc0 {l}")
    def poll(self, loads):
        A = self; l = A.lab("L_pl"); d = A.lab("L_pd")
        A(f"s_mov_b32 s52, 0\n{l}:")
        for (r, va, so, imm) in loads:
            A(f"buffer_load_dwordx4 v[{r}:{r+3}], v{va}, s[40:43], {so} offen offset:{imm} sc1")
        A(f"s_add_u32 s52, s52, 1")
        n = len(loads)
        for i, (r, va, so, imm) in enumerate(loads):
            A(f"s_waitcnt vmcnt({n-1-i})")
            if i == 0: A(f"v_cmp_ne_u64 s[54:55], s[48:49], v[{r+2}:{r+3}]")
            else: A(f"v_cmp_ne_u64 vcc, s[48:49], v[{r+2}:{r+3}]\ns_or_b64 s[54:55], s[54:55], vcc")
        A(f"s_cmp_eq_u64 s[54:55], 0\ns_cbranch_scc1 {d}\ns_cmp_lt_u32 s52, {POLL_MAX}\ns_cbranch_scc1 {l}\n{d}:")
    def xlane(self, op, v, t, steps):
        A = self
        for s in steps:
            A(f"v_mov_b32 v{t}, v{v}\nv_permlane{s}_swap_b32 v{v}, v{t}\n{op} v{v}, v{v}, v{t}")

    def compute(self):
        A = self
        mf = "v_mfma_f32_16x16x32_bf16"
        A("L_compute:")
        A("s_sub_u32 s3, s3, 1\ns_mov_b32 s50, 0")
        A("s_lshr_b32 s32, s31, 2\ns_and_b32 s33, s31, 3\ns_lshl_b32 s35, s30, 2\ns_add_u32 s35, s35, s33")
        A(f"v_lshlrev_b32 v3, 2, v0\nv_add_u32 v3, {MISC}, v3\nv_mov_b32 v9, 1")
        A("v_and_b32 v4, 15, v0\nv_lshrrev_b32 v5, 4, v0\nv_and_b32 v6, 3, v0\nv_bfe_u32 v7, v0, 2, 2\nv_and_b32 v8, 7, v0")
        A("s_waitcnt lgkmcnt(0)")
        A("s_load_dwordx2 s[48:49], s[28:29], 0")
        A.srd(40, 28, WS_SIZE)
        A(f"v_mul_u32_u24 v11, {XROW}, v8\nv_lshl_add_u32 v11, v5, 4, v11\nv_add_u32 v11, {XOFF}, v11")
        A("v_lshl_add_u32 v12, v5, 3, v7\nv_lshlrev_b32 v12, 6, v12\nv_lshrrev_b32 v13, 1, v6\ns_lshl_b32 s36, s3, 1\nv_add_u32 v13, s36, v13")
        A(f"v_and_b32 v14, 1, v5\nv_lshlrev_b32 v14, 1, v14\nv_xor_b32 v13, v13, v14\nv_lshl_add_u32 v12, v13, 4, v12\nv_and_b32 v14, 1, v6\nv_lshl_add_u32 v12, v14, 3, v12\nv_add_u32 v12, {TOFF}, v12")
        A(f"v_lshlrev_b32 v13, 4, v5\nv_add_u32 v13, {GWOFF}, v13")
        A("s_lshl_b32 s36, s30, 4\ns_add_u32 s36, s36, s31")
        A("s_lshr_b32 s37, s30, 1\ns_mul_i32 s37, s37, 14\ns_and_b32 s44, s30, 1\ns_mul_i32 s44, s44, 56\ns_add_u32 s37, s37, s44\ns_add_u32 s37, s37, s31\ns_add_u32 s37, s37, 112")
        A(f"s_cmp_lt_u32 s31, 16\ns_cselect_b32 s36, s36, s37\ns_lshl_b32 s36, s36, 7\ns_lshl_b32 s37, s3, 6\ns_add_u32 s36, s36, s37\ns_add_u32 s36, s36, {WS_S1}")
        A(f"v_mul_u32_u24 v15, {S1ROW}, v8\nv_lshl_add_u32 v15, v5, 4, v15")
        A("s_waitcnt lgkmcnt(0)")
        A(f"s_add_u32 s48, s48, {TAGC_LO:#x}\ns_addc_u32 s49, s49, {TAGC_HI:#x}")
        A.stamp(1)
        A("s_cmp_eq_u32 s3, 3\ns_cbranch_scc1 L_s1done")
        A.wait_prog(P_S1)
        A.stamp(2)
        A("s_cmp_eq_u32 s3, 2\ns_cbranch_scc1 L_logit")
        X0, W0, D = 64, 128, 16
        def rd(ks):
            A(f"ds_read_b128 v[{X0+4*ks}:{X0+4*ks+3}], v11 offset:{ks*64}")
            A(f"ds_read_b64_tr_b16 v[{W0+4*ks}:{W0+4*ks+1}], v12 offset:{ks*2048}")
            A(f"ds_read_b64_tr_b16 v[{W0+4*ks+2}:{W0+4*ks+3}], v12 offset:{ks*2048+256}")
        for ks in range(4): rd(ks)
        for ks in range(16):
            if ks + 4 < 16:
                A("s_waitcnt lgkmcnt(9)")
            else:
                A(f"s_waitcnt lgkmcnt({3*(15-ks)})")
            A(f"{mf} v[{D}:{D+3}], v[{W0+4*ks}:{W0+4*ks+3}], v[{X0+4*ks}:{X0+4*ks+3}], {'0' if ks == 0 else f'v[{D}:{D+3}]'}")
            if ks + 4 < 16: rd(ks + 4)
        A(f"ds_add_u32 v3, v9 offset:{F_S}")
        A(f"v_mov_b32 v22, s48\nv_mov_b32 v23, s49\ns_cmp_ge_u32 s31, 30\ns_cbranch_scc1 L_s1done")
        A(f"v_cvt_pk_bf16_f32 v20, v{D}, v{D+1}\nv_cvt_pk_bf16_f32 v21, v{D+2}, v{D+3}")
        A("s_mov_b32 exec_lo, 0x00ff00ff\ns_mov_b32 exec_hi, 0x00ff00ff\nbuffer_store_dwordx4 v[20:23], v15, s[40:43], s36 offen sc1\ns_mov_b64 exec, -1\ns_branch L_s1done")
        A("L_logit:")
        for ks in range(16):
            A(f"ds_read_b128 v[{X0+4*ks}:{X0+4*ks+3}], v11 offset:{ks*64}\nds_read_b128 v[{W0+4*ks}:{W0+4*ks+3}], v13 offset:{ks*64}")
        A("s_waitcnt lgkmcnt(0)")
        A(f"ds_add_u32 v3, v9 offset:{F_S}")
        for ks in range(16):
            A(f"{mf} v[{D}:{D+3}], v[{W0+4*ks}:{W0+4*ks+3}], v[{X0+4*ks}:{X0+4*ks+3}], {'0' if ks == 0 else f'v[{D}:{D+3}]'}")
        A(f"v_lshlrev_b32 v20, 2, v4\nv_add_u32 v20, {MISC}, v20")
        A(f"v_mul_f32 v21, {f32(-LOG2E)}, v{D}\nv_exp_f32 v21, v21\nv_add_f32 v21, 1.0, v21\nv_rcp_f32 v21, v21")
        A(f"s_mov_b64 exec, 0xffff\nds_write_b32 v20, v21 offset:{M_G}\ns_mov_b64 exec, -1")
        A("L_s1done:")
        A.stamp(3)
        A("v_lshlrev_b32 v11, 5, v6\nv_lshl_add_u32 v11, v7, 3, v11\nv_lshl_add_u32 v11, v5, 1, v11\nv_lshlrev_b32 v11, 4, v11")
        A(f"s_mul_i32 s36, s32, {S1ROW}\ns_lshl_b32 s37, s30, 11\ns_add_u32 s36, s36, s37\ns_add_u32 s36, s36, {WS_S1}")
        A(f"v_and_b32 v13, 1, v5\nv_mul_u32_u24 v12, {S1ROW}, v13\nv_min_u32 v14, 13, v4\nv_lshl_add_u32 v12, v14, 4, v12")
        A(f"s_mul_i32 s37, s3, {2*S1ROW}\ns_mul_i32 s44, s35, 224\ns_add_u32 s37, s37, s44\ns_add_u32 s37, s37, {WS_S1 + 16384}\ns_add_u32 s44, s37, 7168")
        A(f"s_mul_i32 s45, s3, {2*HROW}\ns_add_u32 s45, s45, {MISC + M_H}\nv_mul_u32_u24 v14, {HROW}, v13\nv_lshl_add_u32 v14, v4, 3, v14\nv_add_u32 v14, s45, v14")
        A("s_lshl_b32 s45, s3, 14\nv_lshlrev_b32 v15, 8, v4\nv_add_u32 v15, s45, v15")
        for ks in range(4):
            A(f"v_add_u32 v20, {4*ks}, v5\nv_xor_b32 v20, v20, v4\nv_lshl_add_u32 v{24+ks}, v20, 4, v15")
        A(f"s_lshl_b32 s45, s3, 4\ns_add_u32 s45, s45, {P_K0 + 16}")
        A.poll([(28, 11, "s36", 0), (32, 11, "s36", 16), (36, 12, "s37", 0), (40, 12, "s44", 0)])
        A.stamp(4)
        for ks in range(4):
            for j, src in enumerate((28, 29, 32, 33)):
                if ks == 0: A(f"v_mov_b32 v{44+j}, v{src}")
                else: A(f"v_mov_b32_dpp v{44+4*ks+j}, v{src} row_shl:{4*ks} row_mask:0xf bank_mask:0xf bound_ctrl:1")
        A("v_lshlrev_b32 v16, 16, v36\nv_and_b32 v17, 0xffff0000, v36\nv_lshlrev_b32 v18, 16, v37\nv_and_b32 v19, 0xffff0000, v37")
        A("v_lshlrev_b32 v20, 16, v40\nv_and_b32 v21, 0xffff0000, v40\nv_lshlrev_b32 v22, 16, v41\nv_and_b32 v23, 0xffff0000, v41")
        for i in range(4): A(f"v_mul_f32 v{28+i}, {f32(-LOG2E)}, v{16+i}")
        for i in range(4): A(f"v_exp_f32 v{28+i}, v{28+i}")
        for i in range(4): A(f"v_add_f32 v{28+i}, 1.0, v{28+i}")
        for i in range(4): A(f"v_rcp_f32 v{28+i}, v{28+i}")
        for i in range(4): A(f"v_mul_f32 v{16+i}, v{16+i}, v{28+i}")
        for i in range(4): A(f"v_mul_f32 v{16+i}, v{16+i}, v{20+i}")
        A("v_cvt_pk_bf16_f32 v16, v16, v17\nv_cvt_pk_bf16_f32 v17, v18, v19\nv_cmp_gt_u32 vcc, 14, v4\nv_cndmask_b32 v16, 0, v16, vcc\nv_cndmask_b32 v17, 0, v17, vcc")
        A("s_mov_b32 exec_hi, 0\nds_write_b64 v14, v[16:17]\ns_mov_b64 exec, -1")
        A.wait_prog("s45")
        A.stamp(5)
        KF, S = 64, 28
        for t in range(4):
            for ks in range(4):
                A(f"ds_read_b128 v[{KF+16*t+4*ks}:{KF+16*t+4*ks+3}], v{24+ks} offset:{t*4096}")
        for t in range(4):
            A(f"s_waitcnt lgkmcnt({12-4*t})")
            for ks in range(4):
                A(f"{mf} v[{S+4*t}:{S+4*t+3}], v[{KF+16*t+4*ks}:{KF+16*t+4*ks+3}], v[{44+4*ks}:{44+4*ks+3}], {'0' if ks == 0 else f'v[{S+4*t}:{S+4*t+3}]'}")
        A(f"v_lshlrev_b32 v11, 4, v6\nv_add_u32 v11, {MISC}, v11\nv_lshl_add_u32 v12, v5, 6, v11\ns_lshl_b32 s45, s3, 2\nv_add_u32 v13, s45, v11\ns_lshl_b32 s45, s3, 9\nv_add_u32 v14, s45, v12")
        A(f"v_max3_f32 v16, v{S}, v{S+1}, v{S+2}")
        for i in range(3, 15, 2): A(f"v_max3_f32 v16, v16, v{S+i}, v{S+i+1}")
        A(f"v_max_f32 v16, v16, v{S+15}")
        A.xlane("v_max_f32", 16, 17, (16, 32))
        A(f"s_mov_b64 exec, 0xf\nds_write_b32 v13, v16 offset:{M_MAX}\ns_mov_b64 exec, -1")
        A.signal(F_M)
        A.wait_cnt(F_M, 4)
        A(f"ds_read_b128 v[16:19], v11 offset:{M_MAX}\ns_mov_b32 s45, {f32(CSC)}\ns_waitcnt lgkmcnt(0)")
        A("v_max3_f32 v16, v16, v17, v18\nv_max_f32 v16, v16, v19\nv_mul_f32 v60, s45, v16")
        for i in range(16): A(f"v_fma_f32 v{S+i}, v{S+i}, s45, -v60")
        for i in range(16): A(f"v_exp_f32 v{S+i}, v{S+i}")
        A(f"v_add_f32 v16, v{S}, v{S+1}")
        for i in range(2, 16): A(f"v_add_f32 v16, v16, v{S+i}")
        for i in range(8): A(f"v_cvt_pk_bf16_f32 v{44+i}, v{S+2*i}, v{S+2*i+1}")
        A.xlane("v_add_f32", 16, 17, (16, 32))
        A(f"s_mov_b32 exec_lo, 0x000f000f\ns_mov_b32 exec_hi, 0x000f000f\nds_write_b128 v14, v[44:47] offset:{M_P}\nds_write_b128 v14, v[48:51] offset:{M_P+256}")
        A(f"s_mov_b64 exec, 0xf\nds_write_b32 v13, v16 offset:{M_SUM}\ns_mov_b64 exec, -1")
        A.signal(F_P)
        A("v_and_b32 v16, 1, v5\nv_lshl_add_u32 v16, v16, 2, v7\nv_lshlrev_b32 v16, 1, v16\nv_lshrrev_b32 v17, 1, v6\ns_lshl_b32 s45, s3, 2\nv_add_u32 v17, s45, v17")
        A(f"v_lshl_add_u32 v18, v5, 2, v7\nv_lshlrev_b32 v18, 8, v18\nv_and_b32 v19, 1, v6\nv_lshl_add_u32 v18, v19, 3, v18\nv_add_u32 v18, {VOFF}, v18")
        A("v_xor_b32 v19, v17, v16\nv_lshl_add_u32 v24, v19, 4, v18\nv_add_u32 v17, 2, v17\nv_xor_b32 v19, v17, v16\nv_lshl_add_u32 v25, v19, 4, v18")
        A("v_lshlrev_b32 v26, 14, v6\nv_lshl_add_u32 v26, v7, 6, v26\nv_lshl_add_u32 v26, v5, 4, v26\nv_lshlrev_b32 v27, 9, v6")
        A(f"s_lshl_b32 s36, s30, 16\ns_lshl_b32 s37, s31, 9\ns_add_u32 s36, s36, s37\ns_lshl_b32 s37, s3, 7\ns_add_u32 s36, s36, s37\ns_add_u32 s36, s36, {WS_OA}")
        A(f"s_lshl_b32 s37, s30, 11\ns_lshl_b32 s44, s31, 4\ns_add_u32 s37, s37, s44\ns_add_u32 s37, s37, {WS_LA}")
        A.wait_cnt(F_P, 4)
        PR = 128
        for j in range(8): A(f"ds_read_b128 v[{PR+4*j}:{PR+4*j+3}], v12 offset:{M_P + j*256}")
        A(f"ds_read_b128 v[16:19], v11 offset:{M_SUM}\ns_waitcnt lgkmcnt(0)")
        A("v_add_f32 v16, v16, v17\nv_add_f32 v18, v18, v19\nv_add_f32 v16, v16, v18\nv_rcp_f32 v61, v16\nv_log_f32 v16, v16\nv_mov_b32 v21, 0\nv_mov_b32 v22, s48\nv_mov_b32 v23, s49\nv_add_f32 v20, v16, v60")
        A("s_cmp_lg_u32 s3, 0\ns_cbranch_scc1 L_nolse\ns_mov_b64 exec, 0xf\nbuffer_store_dwordx4 v[20:23], v27, s[40:43], s37 offen sc1\ns_mov_b64 exec, -1\nL_nolse:")
        A.stamp(6)
        A("v_lshrrev_b32 v16, 5, v0\nv_and_b32 v17, 31, v0\nv_lshlrev_b32 v11, 11, v16\nv_lshl_add_u32 v11, v17, 4, v11\nv_lshlrev_b32 v12, 6, v16\nv_lshl_add_u32 v12, v6, 4, v12")
        A(f"s_lshl_b32 s46, s35, 3\ns_lshl_b32 s47, s3, 1\ns_add_u32 s46, s46, s47\ns_lshl_b32 s44, s46, 11\ns_add_u32 s44, s44, {WS_OA}\ns_lshl_b32 s45, s46, 6\ns_add_u32 s45, s45, {WS_LA}")
        A(f"v_add_u32 v16, s47, v16\nv_mul_u32_u24 v13, {OROW}, v16\nv_lshl_add_u32 v13, v17, 3, v13\nv_add_u32 v13, {MISC + M_O}, v13")
        A("v_lshl_add_u32 v16, v5, 3, v7\nv_lshlrev_b32 v16, 7, v16\nv_lshrrev_b32 v17, 1, v7\nv_and_b32 v18, 1, v5\nv_lshl_add_u32 v17, v18, 1, v17\nv_lshlrev_b32 v17, 1, v17")
        A(f"v_lshrrev_b32 v18, 1, v6\nv_add_u32 v18, s47, v18\nv_xor_b32 v17, v17, v18\nv_lshl_add_u32 v16, v17, 4, v16\nv_and_b32 v18, 1, v6\nv_lshl_add_u32 v16, v18, 3, v16\nv_add_u32 v14, {WOFF}, v16")
        A(f"v_mul_u32_u24 v15, {OROW}, v8\nv_lshl_add_u32 v15, v5, 4, v15\nv_add_u32 v15, {MISC + M_O}, v15")
        A(f"v_mul_u32_u24 v62, {HROW}, v8\nv_lshl_add_u32 v62, v5, 4, v62\nv_add_u32 v62, {MISC + M_H}, v62\nv_lshlrev_b32 v63, 2, v4\nv_add_u32 v63, {MISC}, v63")
        A(f"ds_read_b128 v[160:163], v62\nds_read_b128 v[164:167], v62 offset:64\nds_read_b32 v63, v63 offset:{M_G}")
        A("v_lshlrev_b32 v62, 14, v8\nv_lshl_add_u32 v62, v5, 5, v62\nv_lshrrev_b32 v16, 3, v4\nv_lshl_add_u32 v62, v16, 4, v62")
        A(f"s_lshl_b32 s46, s32, 17\ns_lshl_b32 s47, s3, 12\ns_add_u32 s46, s46, s47\ns_lshl_b32 s47, s35, 7\ns_add_u32 s46, s46, s47\ns_add_u32 s46, s46, {WS_FA}")
        VF, O = 64, 28
        for j in range(8):
            A.wait_prog(P_V0 + 8 * (j + 1))
            for t in range(2):
                for hf in range(2):
                    r = VF + 8*j + 4*t + 2*hf
                    A(f"ds_read_b64_tr_b16 v[{r}:{r+1}], v{24+t} offset:{j*8192 + hf*4096}")
            for t in range(2):
                r = VF + 8*j + 4*t
                A(f"s_waitcnt lgkmcnt({2-2*t})\n{mf} v[{O+4*t}:{O+4*t+3}], v[{r}:{r+3}], v[{PR+4*j}:{PR+4*j+3}], {'0' if j == 0 else f'v[{O+4*t}:{O+4*t+3}]'}")
        A.stamp(7)
        A("v_cmp_eq_u32 vcc, 0, v7")
        for i in range(4): A(f"v_cndmask_b32 v{16+i}, v{O+4+i}, v{O+i}, vcc")
        for i in range(4): A(f"v_mul_f32 v{16+i}, v{16+i}, v61")
        A("v_cvt_pk_bf16_f32 v20, v16, v17\nv_cvt_pk_bf16_f32 v21, v18, v19")
        A("s_mov_b32 exec_lo, 0x00ff00ff\ns_mov_b32 exec_hi, 0x00ff00ff\nbuffer_store_dwordx4 v[20:23], v26, s[40:43], s36 offen sc1\ns_mov_b64 exec, -1")
        A.wait_prog(P_ALL)
        A.stamp(8)
        WF = 64
        for ks in (4, 5, 0, 1, 2, 3):
            for hf in range(2):
                r = WF + 4*ks + 2*hf
                A(f"ds_read_b64_tr_b16 v[{r}:{r+1}], v14 offset:{ks*4096 + hf*512}")
        A(f"s_waitcnt lgkmcnt(8)\n{mf} v[56:59], v[{WF+16}:{WF+19}], v[160:163], 0\n{mf} v[56:59], v[{WF+20}:{WF+23}], v[164:167], v[56:59]")
        A.poll([(28, 12, "s45", 0), (32, 11, "s44", 0), (36, 11, "s44", 512), (40, 11, "s44", 1024), (44, 11, "s44", 1536)])
        A.stamp(9)
        for s in range(4): A(f"v_mov_b32_dpp v{16+s}, v28 quad_perm:[{s},{s},{s},{s}] row_mask:0xf bank_mask:0xf")
        A("v_max3_f32 v24, v16, v17, v18\nv_max_f32 v24, v24, v19")
        for s in range(4): A(f"v_sub_f32 v{16+s}, v{16+s}, v24")
        for s in range(4): A(f"v_exp_f32 v{16+s}, v{16+s}")
        for s in range(4):
            r = 32 + 4*s
            A(f"v_and_b32 v{r+3}, 0xffff0000, v{r+1}\nv_lshlrev_b32 v{r+2}, 16, v{r+1}\nv_and_b32 v{r+1}, 0xffff0000, v{r}\nv_lshlrev_b32 v{r}, 16, v{r}")
        A("v_add_f32 v24, v16, v17\nv_add_f32 v25, v18, v19\nv_add_f32 v24, v24, v25\nv_rcp_f32 v24, v24")
        for i in range(4): A(f"v_mul_f32 v{28+i}, v16, v{32+i}")
        for s in range(1, 4):
            for i in range(4): A(f"v_fmac_f32 v{28+i}, v{16+s}, v{32+4*s+i}")
        for i in range(4): A(f"v_mul_f32 v{28+i}, v{28+i}, v24")
        A("v_cvt_pk_bf16_f32 v28, v28, v29\nv_cvt_pk_bf16_f32 v29, v30, v31\nds_write_b64 v13, v[28:29]\ns_waitcnt lgkmcnt(0)\ns_barrier")
        for ks in range(4): A(f"ds_read_b128 v[{32+4*ks}:{35+4*ks}], v15 offset:{ks*64}")
        A("v_cmp_gt_u32 vcc, 8, v4")
        for ks in range(4):
            A(f"s_waitcnt lgkmcnt({3-ks})\n{mf} v[28:31], v[{WF+4*ks}:{WF+4*ks+3}], v[{32+4*ks}:{35+4*ks}], {'0' if ks == 0 else 'v[28:31]'}")
        A("v_cndmask_b32 v16, v58, v56, vcc\nv_cndmask_b32 v17, v59, v57, vcc")
        A("v_cndmask_b32 v18, v30, v28, vcc\nv_cndmask_b32 v19, v31, v29, vcc")
        A("v_sub_f32 v18, v18, v16\nv_sub_f32 v19, v19, v17\nv_fma_f32 v20, v63, v18, v16\nv_fma_f32 v21, v63, v19, v17")
        A("buffer_store_dwordx4 v[20:23], v62, s[40:43], s46 offen sc1")
        A.stamp(10)
        A("s_cmp_lg_u32 s3, 0\ns_cbranch_scc1 L_cend")
        A(f"s_lshl_b32 s44, s32, 5\ns_add_u32 s44, s44, s35\ns_lshl_b32 s44, s44, 12\ns_add_u32 s44, s44, {WS_FA}")
        A.srd(56, 24, 8192)
        A("s_lshr_b32 s45, s35, 2\ns_lshl_b32 s45, s45, 10\ns_lshl_b32 s46, s32, 7\ns_add_u32 s45, s45, s46\ns_lshl_b32 s46, s33, 5\ns_add_u32 s45, s45, s46\nv_lshlrev_b32 v11, 2, v0")
        A.poll([(28 + 4*i, 2, "s44", 1024*i) for i in range(4)])
        A.stamp(11)
        A("v_add_f32 v28, v28, v32\nv_add_f32 v29, v29, v33\nv_add_f32 v36, v36, v40\nv_add_f32 v37, v37, v41\nv_add_f32 v28, v28, v36\nv_add_f32 v29, v29, v37")
        A("v_add_f32_dpp v28, v28, v28 row_ror:8 row_mask:0xf bank_mask:0xf\nv_add_f32_dpp v29, v29, v29 row_ror:8 row_mask:0xf bank_mask:0xf")
        for s in (16, 32):
            A(f"v_mov_b32 v30, v28\nv_mov_b32 v31, v29\nv_permlane{s}_swap_b32 v28, v30\nv_permlane{s}_swap_b32 v29, v31\nv_add_f32 v28, v28, v30\nv_add_f32 v29, v29, v31")
        A("v_cvt_pk_bf16_f32 v28, v28, v29\ns_mov_b64 exec, 0xff\nbuffer_store_dword v28, v11, s[56:59], s45 offen")
        A("s_cmp_lg_u32 s2, 0\ns_cbranch_scc1 L_cend\ns_mov_b64 exec, 1\nbuffer_store_dwordx2 v[22:23], v11, s[40:43], 0 offen sc1")
        A("L_cend:")
        if self.stamps:
            A("s_add_u32 s3, s3, 1")
            A.stamp(12)
            A.dump_stamps(13)

    def text(self):
        self.build()
        body = fix(self.L)
        k = NAME + "_kernel"
        out = HEADER + f"; @launch grid=(256,1,1) block=(320,1,1) lds={LDS_BYTES}\n"
        out += f'.amdgcn_target "amdgcn-amd-amdhsa--gfx950"\n.text\n.globl {k}\n.p2align 8\n.type {k},@function\n{k}:\n'
        out += "\n".join(("" if l.endswith(":") else "    ") + l for l in body) + "\n"
        out += f"    .fill ({CODE_PF + 256} - (. - {k})) / 4, 4, 0xbf810000\n"
        out += f'.section .rodata,"a"\n.p2align 6\n.amdhsa_kernel {k}\n  .amdhsa_next_free_vgpr 256\n  .amdhsa_next_free_sgpr 102\n  .amdhsa_accum_offset 256\n'
        out += "  .amdhsa_group_segment_fixed_size 0\n  .amdhsa_kernarg_size 104\n  .amdhsa_user_sgpr_count 2\n  .amdhsa_user_sgpr_kernarg_segment_ptr 1\n  .amdhsa_system_sgpr_workgroup_id_x 1\n.end_amdhsa_kernel\n"
        return out

if __name__ == "__main__":
    import argparse
    ap = argparse.ArgumentParser()
    ap.add_argument("-o", default="cdna_kernels/%s.s" % NAME)
    ap.add_argument("--thr", type=int, default=28)
    ap.add_argument("--stamps", action="store_true")
    a = ap.parse_args()
    open(a.o, "w").write(G(thr=a.thr, stamps=a.stamps).text())
```

```python
import sys, struct, math
from hazard import fix

NAME = "gated_mix__sliding_block_cached__glu_gated_swiglu__decode"
HEADER = open("cdna_kernels/%s.s.ref" % NAME).read().split("; Override launch geometry")[0]

KOFF, VOFF, TOFF, WOFF, W2OFF, MISC = 0, 65536, 98304, 131072, 147456, 155648
XOFF, XROW = WOFF, 1056
GWOFF = XOFF + 8 * XROW
F_PROG, F_S, F_M, F_P = 0, 256, 512, 768
M_G, M_MAX, M_SUM, M_P, M_H, M_O = 1024, 1088, 1152, 1280, 3328, 4480
HROW, OROW = 144, 272
LDS_BYTES = 163840
WS_S1, WS_OA, WS_LA, WS_FA, WS_SIZE = 0x1000, 0x40000, 0xC0000, 0x100000, 0x200000
S1ROW = 1920 * 16
STAMP = 0x1000000
N_S1, N_K, N_V, N_W = 41, 64, 64, 24
P_S1 = N_S1; P_K0 = N_S1; P_V0 = N_S1 + N_K; P_ALL = N_S1 + N_K + N_V + N_W
def f32(x): return "0x%08x" % struct.unpack("<I", struct.pack("<f", x))[0]
LOG2E = 1.4426950408889634
CSC = LOG2E / math.sqrt(128.0)
TAGC_LO, TAGC_HI = 0x7F4A7C15, 0x9E3779B9
POLL_MAX = 400000
CODE_PF = 10240

class G:
    def __init__(self, thr=28, stamps=False, nt_w=True, nt_kv=True, pf=True, dbg=False, sleep=0):
        self.nt_kv = nt_kv; self.pf = pf; self.dbg = dbg; self.sleep = sleep
        self.L = []; self.nl = 0; self.thr = thr; self.stamps = stamps; self.nst = 0; self.nt_w = nt_w
    def __call__(self, s):
        for line in s.split("\n"):
            line = line.strip()
            if line: self.L.append(line)
    def lab(self, p="L"):
        self.nl += 1; return f"{p}_{self.nl}"
    def srd(self, d, b, n):
        self(f"s_mov_b32 s{d}, s{b}\ns_mov_b32 s{d+1}, s{b+1}\ns_mov_b32 s{d+2}, {n}\ns_mov_b32 s{d+3}, 0x20000")
    def stamp(self, i):
        if self.stamps: self(f"s_memrealtime s[{70+2*i}:{71+2*i}]")
    def dump_stamps(self, n):
        if not self.stamps: return
        A = self
        A("s_waitcnt lgkmcnt(0)\ns_mov_b64 exec, -1")
        A(f"s_mov_b32 s64, s28\ns_mov_b32 s65, s29\ns_mov_b32 s66, 0x10000000\ns_mov_b32 s67, 0x20000")
        A(f"s_lshl_b32 s68, s2, 3\ns_add_u32 s68, s68, s3\ns_lshl_b32 s68, s68, 6\ns_add_u32 s68, s68, {STAMP}")
        for i in range(n): A(f"v_writelane_b32 v250, s{70+2*i}, {i}")
        A(f"v_lshlrev_b32 v251, 2, v0\ns_mov_b64 exec, {(1<<n)-1}\nbuffer_store_dword v250, v251, s[64:67], s68 offen")

    def build(self):
        A = self; thr = self.thr
        A(f"s_cmp_ge_u32 s2, 256\ns_cbranch_scc1 L_end")
        A.stamp(0)
        A("s_load_dwordx16 s[4:19], s[0:1], 0\ns_load_dwordx8 s[20:27], s[0:1], 64\ns_load_dwordx2 s[28:29], s[0:1], 96")
        if self.dbg: A("s_memrealtime s[96:97]")
        for i in range(self.sleep): A("s_sleep 37")
        if self.pf: A("s_getpc_b64 s[38:39]\nv_lshlrev_b32 v1, 5, v0\nglobal_load_dword v255, v1, s[38:39]")
        A("v_lshrrev_b32 v1, 6, v0\nv_and_b32 v0, 63, v0\nv_readfirstlane_b32 s3, v1")
        A("s_and_b32 s30, s2, 7\ns_lshr_b32 s31, s2, 3")
        A(f"v_lshlrev_b32 v2, 4, v0")
        A("s_cmp_lg_u32 s3, 0\ns_cbranch_scc0 L_loader\ns_barrier\ns_branch L_compute")
        self.loader()
        self.compute()
        A("L_end:\ns_endpgm")

    def loader(self):
        A = self; thr = self.thr; W = thr - 4
        nt = " nt" if self.nt_kv else ""; ntw = " nt" if self.nt_w else ""
        A("L_loader:\ns_setprio 3")
        A(f"v_mov_b32 v4, 0\nv_mov_b32 v5, 0\nv_mov_b32 v6, 0\nv_mov_b32 v7, 0\nv_add_u32 v3, {MISC}, v2\nds_write_b128 v3, v[4:7]")
        A("s_lshl_b32 s33, s30, 4\ns_add_u32 s33, s33, s31")
        A("s_lshr_b32 s35, s30, 1\ns_mul_i32 s35, s35, 14\ns_add_u32 s35, s35, s31\ns_sub_u32 s35, s35, 16")
        A("s_movk_i32 s32, 0x2000\ns_mov_b32 s34, 0x400000\ns_cmp_lt_u32 s31, 16")
        A(f"s_cselect_b32 s33, s33, s35\ns_cselect_b32 s32, s32, 3584\ns_cselect_b32 s34, s34, {1792*1024}\ns_lshl_b32 s33, s33, 6")
        A("s_cmp_lt_u32 s31, 30\ns_cselect_b32 s34, s34, 0")
        A("v_lshrrev_b32 v12, 2, v0\nv_mul_lo_u32 v8, v12, s32\nv_lshrrev_b32 v12, 4, v0\nv_and_b32 v13, 2, v12\nv_and_b32 v14, 3, v0\nv_xor_b32 v13, v13, v14\nv_lshl_add_u32 v8, v13, 4, v8")
        A("s_lshl_b32 s36, s32, 4\ns_sub_u32 s36, s36, 1024\nv_add_u32 v9, s36, v8\nv_add_u32 v10, s36, v9\nv_add_u32 v11, s36, v10")
        A(f"v_lshlrev_b32 v3, 2, v0\nv_add_u32 v3, {MISC}, v3\nv_mov_b32 v4, {9 - W}")
        A("s_waitcnt lgkmcnt(0)\ns_barrier")
        A.srd(40, 4, 8192)
        for b in range(8):
            A(f"s_mov_b32 m0, {XOFF + b*32 + (b//4)*4096}" + ("\ns_movk_i32 s37, 0x1000" if b == 0 else ""))
            A(f"buffer_load_dwordx4 v2, s[40:43], {'s37' if b >= 4 else '0'} offen offset:{(b%4)*1024} lds")
        A.srd(44, 22, 1024)
        A(f"s_mov_b32 m0, {GWOFF}\ns_bitcmp1_b32 s30, 0\nbuffer_load_dwordx4 v2, s[44:47], 0 offen lds")
        A("s_cselect_b32 s44, s18, s16\ns_cselect_b32 s45, s19, s17\ns_cmp_lt_u32 s31, 16\ns_cselect_b32 s44, s10, s44\ns_cselect_b32 s45, s11, s45\ns_mov_b32 s46, s34")
        def loop(srd, voffs, niter, m0base, sreg, step, flags):
            l = A.lab("L_ld")
            A(f"s_mov_b32 s37, {m0base}")
            A(f"{l}:\ns_waitcnt vmcnt({W})\nds_write_b32 v3, v4 offset:{F_PROG}\ns_mov_b32 m0, s37\ns_add_u32 s37, s37, 4096")
            for j in range(4):
                A(f"buffer_load_dwordx4 v{voffs[j]}, s[{srd}:{srd+3}], s{sreg} offen offset:{j*1024}{flags} lds")
            A(f"v_add_u32 v4, 4, v4\ns_add_u32 s{sreg}, s{sreg}, {step}\ns_cmp_lt_u32 s37, {m0base + niter*4096}\ns_cbranch_scc1 {l}")
        A("s_lshl_b32 s36, s32, 6")
        A.stamp(1)
        loop(44, [8, 9, 10, 11], 8, TOFF, 33, "s36", ntw)
        A.stamp(2)
        A.srd(40, 6, 0x4000000)
        A("s_lshr_b32 s32, s31, 2\ns_lshl_b32 s32, s32, 3\ns_add_u32 s32, s32, s30\ns_lshl_b32 s32, s32, 20\ns_and_b32 s33, s31, 3\ns_lshl_b32 s33, s33, 16\ns_add_u32 s32, s32, s33\ns_add_u32 s32, s32, 0xC0000\ns_mov_b32 s33, s32")
        A("v_and_b32 v13, 15, v0\nv_lshlrev_b32 v14, 8, v12")
        for j in range(4):
            A(f"v_add_u32 v15, {4*j}, v12\nv_xor_b32 v15, v15, v13\nv_lshl_add_u32 v{8+j}, v15, 4, v14")
        loop(40, [8, 9, 10, 11], 16, KOFF, 33, 4096, nt)
        A.stamp(3)
        A.srd(44, 8, 0x4000000)
        for j in range(2):
            A(f"v_add_u32 v15, {4*j}, v12\nv_lshlrev_b32 v15, 1, v15\nv_xor_b32 v15, v15, v13\nv_lshl_add_u32 v{8+j}, v15, 4, v14")
        loop(44, [8, 9, 8, 9], 8, VOFF, 32, 4096, nt)
        l = A.lab("L_ws")
        A(f"{l}:\nds_read_b32 v5, v3 offset:{F_S}\ns_waitcnt lgkmcnt(0)\nv_readfirstlane_b32 s37, v5\ns_cmp_ge_u32 s37, 3\ns_cbranch_scc0 {l}")
        loop(44, [8, 9, 8, 9], 8, VOFF + 32768, 32, 4096, nt)
        A.stamp(4)
        A.srd(40, 12, 0x400000)
        A.srd(44, 20, 1792*1024)
        A("s_lshl_b32 s32, s30, 2\ns_and_b32 s33, s31, 3\ns_add_u32 s32, s32, s33\ns_lshr_b32 s33, s31, 2\ns_lshl_b32 s33, s33, 7")
        A(f"s_mul_i32 s34, s32, {56*1024}\ns_add_u32 s34, s34, s33\ns_lshl_b32 s32, s32, 17\ns_add_u32 s32, s32, s33")
        A("v_lshrrev_b32 v14, 3, v0\nv_lshlrev_b32 v14, 10, v14\nv_and_b32 v13, 7, v0\nv_and_b32 v15, 1, v12\nv_lshlrev_b32 v15, 1, v15\nv_xor_b32 v13, v13, v15")
        A("v_lshl_add_u32 v8, v13, 4, v14\nv_xor_b32 v9, 64, v8\nv_add_u32 v9, 7168, v9\nv_add_u32 v10, 14336, v8\nv_add_u32 v11, 14336, v9")
        loop(40, [8, 9, 10, 11], 4, WOFF, 32, 32768, ntw)
        loop(44, [8, 9, 10, 11], 2, W2OFF, 34, 32768, ntw)
        A.stamp(5)
        w = W
        while True:
            A(f"s_waitcnt vmcnt({w})\nds_write_b32 v3, v4 offset:{F_PROG}")
            if w == 0: break
            nw = max(0, min(w - 4, N_W) if w > N_W else 0)
            A(f"v_add_u32 v4, {w - nw}, v4")
            w = nw
        A.stamp(6)
        A.dump_stamps(7)
        A("s_endpgm")

    def wait_prog(self, n):
        A = self; l = A.lab("L_wp"); d = A.lab("L_wd")
        A(f"s_cmp_ge_i32 s50, {n}\ns_cbranch_scc1 {d}")
        A(f"{l}:\nds_read_b32 v10, v3 offset:{F_PROG}\ns_waitcnt lgkmcnt(0)\nv_readfirstlane_b32 s50, v10\ns_cmp_ge_i32 s50, {n}\ns_cbranch_scc0 {l}\n{d}:")
    def signal(self, off):
        self(f"s_waitcnt lgkmcnt(0)\nds_add_u32 v3, v9 offset:{off}")
    def wait_cnt(self, off, n):
        A = self; l = A.lab("L_wc")
        A(f"{l}:\nds_read_b32 v10, v3 offset:{off}\ns_waitcnt lgkmcnt(0)\nv_readfirstlane_b32 s51, v10\ns_cmp_ge_u32 s51, {n}\ns_cbranch_scc0 {l}")
    def poll(self, loads):
        A = self; l = A.lab("L_pl"); d = A.lab("L_pd")
        A(f"s_mov_b32 s52, 0\n{l}:")
        for (r, va, so, imm) in loads:
            A(f"buffer_load_dwordx4 v[{r}:{r+3}], v{va}, s[40:43], {so} offen offset:{imm} sc1")
        A(f"s_add_u32 s52, s52, 1")
        n = len(loads)
        for i, (r, va, so, imm) in enumerate(loads):
            A(f"s_waitcnt vmcnt({n-1-i})")
            if i == 0: A(f"v_cmp_ne_u64 s[54:55], s[48:49], v[{r+2}:{r+3}]")
            else: A(f"v_cmp_ne_u64 vcc, s[48:49], v[{r+2}:{r+3}]\ns_or_b64 s[54:55], s[54:55], vcc")
        A(f"s_cmp_eq_u64 s[54:55], 0\ns_cbranch_scc1 {d}\ns_cmp_lt_u32 s52, {POLL_MAX}\ns_cbranch_scc1 {l}\n{d}:")
    def xlane(self, op, v, t, steps):
        A = self
        for s in steps:
            A(f"v_mov_b32 v{t}, v{v}\nv_permlane{s}_swap_b32 v{v}, v{t}\n{op} v{v}, v{v}, v{t}")

    def compute(self):
        A = self
        mf = "v_mfma_f32_16x16x32_bf16"
        A("L_compute:")
        A("s_sub_u32 s3, s3, 1\ns_mov_b32 s50, 0")
        A("s_lshr_b32 s32, s31, 2\ns_and_b32 s33, s31, 3\ns_lshl_b32 s35, s30, 2\ns_add_u32 s35, s35, s33")
        A(f"v_lshlrev_b32 v3, 2, v0\nv_add_u32 v3, {MISC}, v3\nv_mov_b32 v9, 1")
        A("v_and_b32 v4, 15, v0\nv_lshrrev_b32 v5, 4, v0\nv_and_b32 v6, 3, v0\nv_bfe_u32 v7, v0, 2, 2\nv_and_b32 v8, 7, v0")
        A("s_waitcnt lgkmcnt(0)")
        A("s_load_dwordx2 s[48:49], s[28:29], 0")
        A.srd(40, 28, WS_SIZE)
        A(f"v_mul_u32_u24 v11, {XROW}, v8\nv_lshl_add_u32 v11, v5, 4, v11\nv_add_u32 v11, {XOFF}, v11")
        A("v_lshl_add_u32 v12, v5, 3, v7\nv_lshlrev_b32 v12, 6, v12\nv_lshrrev_b32 v13, 1, v6\ns_lshl_b32 s36, s3, 1\nv_add_u32 v13, s36, v13")
        A(f"v_and_b32 v14, 1, v5\nv_lshlrev_b32 v14, 1, v14\nv_xor_b32 v13, v13, v14\nv_lshl_add_u32 v12, v13, 4, v12\nv_and_b32 v14, 1, v6\nv_lshl_add_u32 v12, v14, 3, v12\nv_add_u32 v12, {TOFF}, v12")
        A(f"v_lshlrev_b32 v13, 4, v5\nv_add_u32 v13, {GWOFF}, v13")
        A("s_lshl_b32 s36, s30, 4\ns_add_u32 s36, s36, s31")
        A("s_lshr_b32 s37, s30, 1\ns_mul_i32 s37, s37, 14\ns_and_b32 s44, s30, 1\ns_mul_i32 s44, s44, 56\ns_add_u32 s37, s37, s44\ns_add_u32 s37, s37, s31\ns_add_u32 s37, s37, 112")
        A(f"s_cmp_lt_u32 s31, 16\ns_cselect_b32 s36, s36, s37\ns_lshl_b32 s36, s36, 7\ns_lshl_b32 s37, s3, 6\ns_add_u32 s36, s36, s37\ns_add_u32 s36, s36, {WS_S1}")
        A(f"v_mul_u32_u24 v15, {S1ROW}, v8\nv_lshl_add_u32 v15, v5, 4, v15")
        A("s_waitcnt lgkmcnt(0)")
        A(f"s_add_u32 s48, s48, {TAGC_LO:#x}\ns_addc_u32 s49, s49, {TAGC_HI:#x}")
        A.stamp(1)
        A("s_cmp_eq_u32 s3, 3\ns_cbranch_scc1 L_s1done")
        A.wait_prog(P_S1)
        A.stamp(2)
        A("s_cmp_eq_u32 s3, 2\ns_cbranch_scc1 L_logit")
        X0, W0, D = 64, 128, 16
        def rd(ks):
            A(f"ds_read_b128 v[{X0+4*ks}:{X0+4*ks+3}], v11 offset:{ks*64}")
            A(f"ds_read_b64_tr_b16 v[{W0+4*ks}:{W0+4*ks+1}], v12 offset:{ks*2048}")
            A(f"ds_read_b64_tr_b16 v[{W0+4*ks+2}:{W0+4*ks+3}], v12 offset:{ks*2048+256}")
        for ks in range(4): rd(ks)
        for ks in range(16):
            if ks + 4 < 16:
                A("s_waitcnt lgkmcnt(9)")
            else:
                A(f"s_waitcnt lgkmcnt({3*(15-ks)})")
            A(f"{mf} v[{D}:{D+3}], v[{W0+4*ks}:{W0+4*ks+3}], v[{X0+4*ks}:{X0+4*ks+3}], {'0' if ks == 0 else f'v[{D}:{D+3}]'}")
            if ks + 4 < 16: rd(ks + 4)
        A(f"ds_add_u32 v3, v9 offset:{F_S}")
        A(f"v_mov_b32 v22, s48\nv_mov_b32 v23, s49\ns_cmp_ge_u32 s31, 30\ns_cbranch_scc1 L_s1done")
        A(f"v_cvt_pk_bf16_f32 v20, v{D}, v{D+1}\nv_cvt_pk_bf16_f32 v21, v{D+2}, v{D+3}")
        A("s_mov_b32 exec_lo, 0x00ff00ff\ns_mov_b32 exec_hi, 0x00ff00ff\nbuffer_store_dwordx4 v[20:23], v15, s[40:43], s36 offen sc1\ns_mov_b64 exec, -1\ns_branch L_s1done")
        A("L_logit:")
        for ks in range(16):
            A(f"ds_read_b128 v[{X0+4*ks}:{X0+4*ks+3}], v11 offset:{ks*64}\nds_read_b128 v[{W0+4*ks}:{W0+4*ks+3}], v13 offset:{ks*64}")
        A("s_waitcnt lgkmcnt(0)")
        A(f"ds_add_u32 v3, v9 offset:{F_S}")
        for ks in range(16):
            A(f"{mf} v[{D}:{D+3}], v[{W0+4*ks}:{W0+4*ks+3}], v[{X0+4*ks}:{X0+4*ks+3}], {'0' if ks == 0 else f'v[{D}:{D+3}]'}")
        A(f"v_lshlrev_b32 v20, 2, v4\nv_add_u32 v20, {MISC}, v20")
        A(f"v_mul_f32 v21, {f32(-LOG2E)}, v{D}\nv_exp_f32 v21, v21\nv_add_f32 v21, 1.0, v21\nv_rcp_f32 v21, v21")
        A(f"s_mov_b64 exec, 0xffff\nds_write_b32 v20, v21 offset:{M_G}\ns_mov_b64 exec, -1")
        A("L_s1done:")
        A.stamp(3)
        A("v_lshlrev_b32 v11, 5, v6\nv_lshl_add_u32 v11, v7, 3, v11\nv_lshl_add_u32 v11, v5, 1, v11\nv_lshlrev_b32 v11, 4, v11")
        A(f"s_mul_i32 s36, s32, {S1ROW}\ns_lshl_b32 s37, s30, 11\ns_add_u32 s36, s36, s37\ns_add_u32 s36, s36, {WS_S1}")
        A(f"v_and_b32 v13, 1, v5\nv_mul_u32_u24 v12, {S1ROW}, v13\nv_min_u32 v14, 13, v4\nv_lshl_add_u32 v12, v14, 4, v12")
        A(f"s_mul_i32 s37, s3, {2*S1ROW}\ns_mul_i32 s44, s35, 224\ns_add_u32 s37, s37, s44\ns_add_u32 s37, s37, {WS_S1 + 16384}\ns_add_u32 s44, s37, 7168")
        A(f"s_mul_i32 s45, s3, {2*HROW}\ns_add_u32 s45, s45, {MISC + M_H}\nv_mul_u32_u24 v14, {HROW}, v13\nv_lshl_add_u32 v14, v4, 3, v14\nv_add_u32 v14, s45, v14")
        A("s_lshl_b32 s45, s3, 14\nv_lshlrev_b32 v15, 8, v4\nv_add_u32 v15, s45, v15")
        for ks in range(4):
            A(f"v_add_u32 v20, {4*ks}, v5\nv_xor_b32 v20, v20, v4\nv_lshl_add_u32 v{24+ks}, v20, 4, v15")
        A(f"s_lshl_b32 s45, s3, 4\ns_add_u32 s45, s45, {P_K0 + 16}")
        A.poll([(28, 11, "s36", 0), (32, 11, "s36", 16), (36, 12, "s37", 0), (40, 12, "s44", 0)])
        A.stamp(4)
        for ks in range(4):
            for j, src in enumerate((28, 29, 32, 33)):
                if ks == 0: A(f"v_mov_b32 v{44+j}, v{src}")
                else: A(f"v_mov_b32_dpp v{44+4*ks+j}, v{src} row_shl:{4*ks} row_mask:0xf bank_mask:0xf bound_ctrl:1")
        A("v_lshlrev_b32 v16, 16, v36\nv_and_b32 v17, 0xffff0000, v36\nv_lshlrev_b32 v18, 16, v37\nv_and_b32 v19, 0xffff0000, v37")
        A("v_lshlrev_b32 v20, 16, v40\nv_and_b32 v21, 0xffff0000, v40\nv_lshlrev_b32 v22, 16, v41\nv_and_b32 v23, 0xffff0000, v41")
        for i in range(4): A(f"v_mul_f32 v{28+i}, {f32(-LOG2E)}, v{16+i}")
        for i in range(4): A(f"v_exp_f32 v{28+i}, v{28+i}")
        for i in range(4): A(f"v_add_f32 v{28+i}, 1.0, v{28+i}")
        for i in range(4): A(f"v_rcp_f32 v{28+i}, v{28+i}")
        for i in range(4): A(f"v_mul_f32 v{16+i}, v{16+i}, v{28+i}")
        for i in range(4): A(f"v_mul_f32 v{16+i}, v{16+i}, v{20+i}")
        A("v_cvt_pk_bf16_f32 v16, v16, v17\nv_cvt_pk_bf16_f32 v17, v18, v19\nv_cmp_gt_u32 vcc, 14, v4\nv_cndmask_b32 v16, 0, v16, vcc\nv_cndmask_b32 v17, 0, v17, vcc")
        A("s_mov_b32 exec_hi, 0\nds_write_b64 v14, v[16:17]\ns_mov_b64 exec, -1")
        A.wait_prog("s45")
        A.stamp(5)
        KF, S = 64, 28
        for t in range(4):
            for ks in range(4):
                A(f"ds_read_b128 v[{KF+16*t+4*ks}:{KF+16*t+4*ks+3}], v{24+ks} offset:{t*4096}")
        for t in range(4):
            A(f"s_waitcnt lgkmcnt({12-4*t})")
            for ks in range(4):
                A(f"{mf} v[{S+4*t}:{S+4*t+3}], v[{KF+16*t+4*ks}:{KF+16*t+4*ks+3}], v[{44+4*ks}:{44+4*ks+3}], {'0' if ks == 0 else f'v[{S+4*t}:{S+4*t+3}]'}")
        A(f"v_lshlrev_b32 v11, 4, v6\nv_add_u32 v11, {MISC}, v11\nv_lshl_add_u32 v12, v5, 6, v11\ns_lshl_b32 s45, s3, 2\nv_add_u32 v13, s45, v11\ns_lshl_b32 s45, s3, 9\nv_add_u32 v14, s45, v12")
        A(f"v_max3_f32 v16, v{S}, v{S+1}, v{S+2}")
        for i in range(3, 15, 2): A(f"v_max3_f32 v16, v16, v{S+i}, v{S+i+1}")
        A(f"v_max_f32 v16, v16, v{S+15}")
        A.xlane("v_max_f32", 16, 17, (16, 32))
        A(f"s_mov_b64 exec, 0xf\nds_write_b32 v13, v16 offset:{M_MAX}\ns_mov_b64 exec, -1")
        A.signal(F_M)
        A.wait_cnt(F_M, 4)
        A(f"ds_read_b128 v[16:19], v11 offset:{M_MAX}\ns_mov_b32 s45, {f32(CSC)}\ns_waitcnt lgkmcnt(0)")
        A("v_max3_f32 v16, v16, v17, v18\nv_max_f32 v16, v16, v19\nv_mul_f32 v60, s45, v16")
        for i in range(16): A(f"v_fma_f32 v{S+i}, v{S+i}, s45, -v60")
        for i in range(16): A(f"v_exp_f32 v{S+i}, v{S+i}")
        A(f"v_add_f32 v16, v{S}, v{S+1}")
        for i in range(2, 16): A(f"v_add_f32 v16, v16, v{S+i}")
        for i in range(8): A(f"v_cvt_pk_bf16_f32 v{44+i}, v{S+2*i}, v{S+2*i+1}")
        A.xlane("v_add_f32", 16, 17, (16, 32))
        A(f"s_mov_b32 exec_lo, 0x000f000f\ns_mov_b32 exec_hi, 0x000f000f\nds_write_b128 v14, v[44:47] offset:{M_P}\nds_write_b128 v14, v[48:51] offset:{M_P+256}")
        A(f"s_mov_b64 exec, 0xf\nds_write_b32 v13, v16 offset:{M_SUM}\ns_mov_b64 exec, -1")
        A.signal(F_P)
        A("v_and_b32 v16, 1, v5\nv_lshl_add_u32 v16, v16, 2, v7\nv_lshlrev_b32 v16, 1, v16\nv_lshrrev_b32 v17, 1, v6\ns_lshl_b32 s45, s3, 2\nv_add_u32 v17, s45, v17")
        A(f"v_lshl_add_u32 v18, v5, 2, v7\nv_lshlrev_b32 v18, 8, v18\nv_and_b32 v19, 1, v6\nv_lshl_add_u32 v18, v19, 3, v18\nv_add_u32 v18, {VOFF}, v18")
        A("v_xor_b32 v19, v17, v16\nv_lshl_add_u32 v24, v19, 4, v18\nv_add_u32 v17, 2, v17\nv_xor_b32 v19, v17, v16\nv_lshl_add_u32 v25, v19, 4, v18")
        A("v_lshlrev_b32 v26, 14, v6\nv_lshl_add_u32 v26, v7, 6, v26\nv_lshl_add_u32 v26, v5, 4, v26\nv_lshlrev_b32 v27, 9, v6")
        A(f"s_lshl_b32 s36, s30, 16\ns_lshl_b32 s37, s31, 9\ns_add_u32 s36, s36, s37\ns_lshl_b32 s37, s3, 7\ns_add_u32 s36, s36, s37\ns_add_u32 s36, s36, {WS_OA}")
        A(f"s_lshl_b32 s37, s30, 11\ns_lshl_b32 s44, s31, 4\ns_add_u32 s37, s37, s44\ns_add_u32 s37, s37, {WS_LA}")
        A.wait_cnt(F_P, 4)
        PR = 128
        for j in range(8): A(f"ds_read_b128 v[{PR+4*j}:{PR+4*j+3}], v12 offset:{M_P + j*256}")
        A(f"ds_read_b128 v[16:19], v11 offset:{M_SUM}\ns_waitcnt lgkmcnt(0)")
        A("v_add_f32 v16, v16, v17\nv_add_f32 v18, v18, v19\nv_add_f32 v16, v16, v18\nv_rcp_f32 v61, v16\nv_log_f32 v16, v16\nv_mov_b32 v21, 0\nv_mov_b32 v22, s48\nv_mov_b32 v23, s49\nv_add_f32 v20, v16, v60")
        A("s_cmp_lg_u32 s3, 0\ns_cbranch_scc1 L_nolse\ns_mov_b64 exec, 0xf\nbuffer_store_dwordx4 v[20:23], v27, s[40:43], s37 offen sc1\ns_mov_b64 exec, -1\nL_nolse:")
        A.stamp(6)
        A("v_lshrrev_b32 v16, 5, v0\nv_and_b32 v17, 31, v0\nv_lshlrev_b32 v11, 11, v16\nv_lshl_add_u32 v11, v17, 4, v11\nv_lshlrev_b32 v12, 6, v16\nv_lshl_add_u32 v12, v6, 4, v12")
        A(f"s_lshl_b32 s46, s35, 3\ns_lshl_b32 s47, s3, 1\ns_add_u32 s46, s46, s47\ns_lshl_b32 s44, s46, 11\ns_add_u32 s44, s44, {WS_OA}\ns_lshl_b32 s45, s46, 6\ns_add_u32 s45, s45, {WS_LA}")
        A(f"v_add_u32 v16, s47, v16\nv_mul_u32_u24 v13, {OROW}, v16\nv_lshl_add_u32 v13, v17, 3, v13\nv_add_u32 v13, {MISC + M_O}, v13")
        A("v_lshl_add_u32 v16, v5, 3, v7\nv_lshlrev_b32 v16, 7, v16\nv_lshrrev_b32 v17, 1, v7\nv_and_b32 v18, 1, v5\nv_lshl_add_u32 v17, v18, 1, v17\nv_lshlrev_b32 v17, 1, v17")
        A(f"v_lshrrev_b32 v18, 1, v6\nv_add_u32 v18, s47, v18\nv_xor_b32 v17, v17, v18\nv_lshl_add_u32 v16, v17, 4, v16\nv_and_b32 v18, 1, v6\nv_lshl_add_u32 v16, v18, 3, v16\nv_add_u32 v14, {WOFF}, v16")
        A(f"v_mul_u32_u24 v15, {OROW}, v8\nv_lshl_add_u32 v15, v5, 4, v15\nv_add_u32 v15, {MISC + M_O}, v15")
        A(f"v_mul_u32_u24 v62, {HROW}, v8\nv_lshl_add_u32 v62, v5, 4, v62\nv_add_u32 v62, {MISC + M_H}, v62\nv_lshlrev_b32 v63, 2, v4\nv_add_u32 v63, {MISC}, v63")
        A(f"ds_read_b128 v[160:163], v62\nds_read_b128 v[164:167], v62 offset:64\nds_read_b32 v63, v63 offset:{M_G}")
        A("v_lshlrev_b32 v62, 14, v8\nv_lshl_add_u32 v62, v5, 5, v62\nv_lshrrev_b32 v16, 3, v4\nv_lshl_add_u32 v62, v16, 4, v62")
        A(f"s_lshl_b32 s46, s32, 17\ns_lshl_b32 s47, s3, 12\ns_add_u32 s46, s46, s47\ns_lshl_b32 s47, s35, 7\ns_add_u32 s46, s46, s47\ns_add_u32 s46, s46, {WS_FA}")
        VF, O = 64, 28
        for j in range(8):
            A.wait_prog(P_V0 + 8 * (j + 1))
            for t in range(2):
                for hf in range(2):
                    r = VF + 8*j + 4*t + 2*hf
                    A(f"ds_read_b64_tr_b16 v[{r}:{r+1}], v{24+t} offset:{j*8192 + hf*4096}")
            for t in range(2):
                r = VF + 8*j + 4*t
                A(f"s_waitcnt lgkmcnt({2-2*t})\n{mf} v[{O+4*t}:{O+4*t+3}], v[{r}:{r+3}], v[{PR+4*j}:{PR+4*j+3}], {'0' if j == 0 else f'v[{O+4*t}:{O+4*t+3}]'}")
        A.stamp(7)
        A("v_cmp_eq_u32 vcc, 0, v7")
        for i in range(4): A(f"v_cndmask_b32 v{16+i}, v{O+4+i}, v{O+i}, vcc")
        for i in range(4): A(f"v_mul_f32 v{16+i}, v{16+i}, v61")
        A("v_cvt_pk_bf16_f32 v20, v16, v17\nv_cvt_pk_bf16_f32 v21, v18, v19")
        A("s_mov_b32 exec_lo, 0x00ff00ff\ns_mov_b32 exec_hi, 0x00ff00ff\nbuffer_store_dwordx4 v[20:23], v26, s[40:43], s36 offen sc1\ns_mov_b64 exec, -1")
        A.wait_prog(P_ALL)
        A.stamp(8)
        WF = 64
        for ks in (4, 5, 0, 1, 2, 3):
            for hf in range(2):
                r = WF + 4*ks + 2*hf
                A(f"ds_read_b64_tr_b16 v[{r}:{r+1}], v14 offset:{ks*4096 + hf*512}")
        A(f"s_waitcnt lgkmcnt(8)\n{mf} v[56:59], v[{WF+16}:{WF+19}], v[160:163], 0\n{mf} v[56:59], v[{WF+20}:{WF+23}], v[164:167], v[56:59]")
        A.poll([(28, 12, "s45", 0), (32, 11, "s44", 0), (36, 11, "s44", 512), (40, 11, "s44", 1024), (44, 11, "s44", 1536)])
        A.stamp(9)
        for s in range(4): A(f"v_mov_b32_dpp v{16+s}, v28 quad_perm:[{s},{s},{s},{s}] row_mask:0xf bank_mask:0xf")
        A("v_max3_f32 v24, v16, v17, v18\nv_max_f32 v24, v24, v19")
        for s in range(4): A(f"v_sub_f32 v{16+s}, v{16+s}, v24")
        for s in range(4): A(f"v_exp_f32 v{16+s}, v{16+s}")
        for s in range(4):
            r = 32 + 4*s
            A(f"v_and_b32 v{r+3}, 0xffff0000, v{r+1}\nv_lshlrev_b32 v{r+2}, 16, v{r+1}\nv_and_b32 v{r+1}, 0xffff0000, v{r}\nv_lshlrev_b32 v{r}, 16, v{r}")
        A("v_add_f32 v24, v16, v17\nv_add_f32 v25, v18, v19\nv_add_f32 v24, v24, v25\nv_rcp_f32 v24, v24")
        for i in range(4): A(f"v_mul_f32 v{28+i}, v16, v{32+i}")
        for s in range(1, 4):
            for i in range(4): A(f"v_fmac_f32 v{28+i}, v{16+s}, v{32+4*s+i}")
        for i in range(4): A(f"v_mul_f32 v{28+i}, v{28+i}, v24")
        A("v_cvt_pk_bf16_f32 v28, v28, v29\nv_cvt_pk_bf16_f32 v29, v30, v31\nds_write_b64 v13, v[28:29]\ns_waitcnt lgkmcnt(0)\ns_barrier")
        for ks in range(4): A(f"ds_read_b128 v[{32+4*ks}:{35+4*ks}], v15 offset:{ks*64}")
        A("v_cmp_gt_u32 vcc, 8, v4")
        for ks in range(4):
            A(f"s_waitcnt lgkmcnt({3-ks})\n{mf} v[28:31], v[{WF+4*ks}:{WF+4*ks+3}], v[{32+4*ks}:{35+4*ks}], {'0' if ks == 0 else 'v[28:31]'}")
        A("v_cndmask_b32 v16, v58, v56, vcc\nv_cndmask_b32 v17, v59, v57, vcc")
        A("v_cndmask_b32 v18, v30, v28, vcc\nv_cndmask_b32 v19, v31, v29, vcc")
        A("v_sub_f32 v18, v18, v16\nv_sub_f32 v19, v19, v17\nv_fma_f32 v20, v63, v18, v16\nv_fma_f32 v21, v63, v19, v17")
        A("buffer_store_dwordx4 v[20:23], v62, s[40:43], s46 offen sc1")
        A.stamp(10)
        A("s_cmp_lg_u32 s3, 0\ns_cbranch_scc1 L_cend")
        A(f"s_lshl_b32 s44, s32, 5\ns_add_u32 s44, s44, s35\ns_lshl_b32 s44, s44, 12\ns_add_u32 s44, s44, {WS_FA}")
        A.srd(56, 24, 8192)
        A("s_lshr_b32 s45, s35, 2\ns_lshl_b32 s45, s45, 10\ns_lshl_b32 s46, s32, 7\ns_add_u32 s45, s45, s46\ns_lshl_b32 s46, s33, 5\ns_add_u32 s45, s45, s46\nv_lshlrev_b32 v11, 2, v0")
        A.poll([(28 + 4*i, 2, "s44", 1024*i) for i in range(4)])
        A.stamp(11)
        A("v_add_f32 v28, v28, v32\nv_add_f32 v29, v29, v33\nv_add_f32 v36, v36, v40\nv_add_f32 v37, v37, v41\nv_add_f32 v28, v28, v36\nv_add_f32 v29, v29, v37")
        A("v_add_f32_dpp v28, v28, v28 row_ror:8 row_mask:0xf bank_mask:0xf\nv_add_f32_dpp v29, v29, v29 row_ror:8 row_mask:0xf bank_mask:0xf")
        for s in (16, 32):
            A(f"v_mov_b32 v30, v28\nv_mov_b32 v31, v29\nv_permlane{s}_swap_b32 v28, v30\nv_permlane{s}_swap_b32 v29, v31\nv_add_f32 v28, v28, v30\nv_add_f32 v29, v29, v31")
        A("v_cvt_pk_bf16_f32 v28, v28, v29\ns_mov_b64 exec, 0xff\nbuffer_store_dword v28, v11, s[56:59], s45 offen")
        A("s_cmp_lg_u32 s2, 0\ns_cbranch_scc1 L_cend\ns_mov_b64 exec, 1\nbuffer_store_dwordx2 v[22:23], v11, s[40:43], 0 offen sc1")
        A("L_cend:")
        if self.dbg:
            A("s_cmp_lg_u32 s3, 0\ns_cbranch_scc1 L_end\ns_memrealtime s[98:99]\ns_waitcnt lgkmcnt(0)\ns_not_b32 s96, s96\ns_mov_b64 exec, 1\nv_mov_b32 v1, 0\nv_mov_b32 v4, s96\nv_mov_b32 v5, s98")
            A("global_atomic_umax v1, v4, s[26:27]\nglobal_atomic_umax v1, v5, s[26:27] offset:4")
        if self.stamps:
            A("s_add_u32 s3, s3, 1")
            A.stamp(12)
            A.dump_stamps(13)

    def text(self):
        self.build()
        body = fix(self.L)
        k = NAME + "_kernel"
        out = HEADER + f"; @launch grid=(256,1,1) block=(320,1,1) lds={LDS_BYTES}\n"
        out += f'.amdgcn_target "amdgcn-amd-amdhsa--gfx950"\n.text\n.globl {k}\n.p2align 8\n.type {k},@function\n{k}:\n'
        out += "\n".join(("" if l.endswith(":") else "    ") + l for l in body) + "\n"
        out += f"    .fill ({CODE_PF + 256} - (. - {k})) / 4, 4, 0xbf810000\n"
        out += f'.section .rodata,"a"\n.p2align 6\n.amdhsa_kernel {k}\n  .amdhsa_next_free_vgpr 256\n  .amdhsa_next_free_sgpr 102\n  .amdhsa_accum_offset 256\n'
        out += "  .amdhsa_group_segment_fixed_size 0\n  .amdhsa_kernarg_size 104\n  .amdhsa_user_sgpr_count 2\n  .amdhsa_user_sgpr_kernarg_segment_ptr 1\n  .amdhsa_system_sgpr_workgroup_id_x 1\n.end_amdhsa_kernel\n"
        return out

if __name__ == "__main__":
    import argparse
    ap = argparse.ArgumentParser()
    ap.add_argument("-o", default="cdna_kernels/%s.s" % NAME)
    ap.add_argument("--thr", type=int, default=28)
    ap.add_argument("--stamps", action="store_true")
    ap.add_argument("--opt", default="")
    a = ap.parse_args()
    open(a.o, "w").write(G(thr=a.thr, stamps=a.stamps, **eval("dict(%s)" % a.opt)).text())
```

```python
import sys, struct, math
from hazard import fix

NAME = "gated_mix__sliding_block_cached__glu_gated_swiglu__decode"
HEADER = open("cdna_kernels/%s.s.ref" % NAME).read().split("; Override launch geometry")[0]

KOFF, VOFF, TOFF, WOFF, W2OFF, MISC = 0, 65536, 98304, 131072, 147456, 155648
XOFF, XROW = WOFF, 1056
GWOFF = XOFF + 8 * XROW
F_PROG, F_S, F_M, F_P = 0, 256, 512, 768
M_G, M_MAX, M_SUM, M_P, M_H, M_O = 1024, 1088, 1152, 1280, 3328, 4480
HROW, OROW = 144, 272
LDS_BYTES = 163840
WS_S1, WS_OA, WS_LA, WS_FA, WS_SIZE = 0x1000, 0x40000, 0xC0000, 0x100000, 0x200000
S1ROW = 1920 * 16
STAMP = 0x1000000
N_S1, N_K, N_V, N_W = 41, 64, 64, 24
P_S1 = N_S1; P_K0 = N_S1; P_V0 = N_S1 + N_K; P_ALL = N_S1 + N_K + N_V + N_W
def f32(x): return "0x%08x" % struct.unpack("<I", struct.pack("<f", x))[0]
LOG2E = 1.4426950408889634
CSC = LOG2E / math.sqrt(128.0)
TAGC_LO, TAGC_HI = 0x7F4A7C15, 0x9E3779B9
POLL_MAX = 400000
CODE_PF = 10240

class G:
    def __init__(self, thr=28, stamps=False, nt_w=True, nt_kv=True, pf=True, dbg=False, sleep=0, probe=None):
        self.probe = probe
        self.nt_kv = nt_kv; self.pf = pf; self.dbg = dbg; self.sleep = sleep
        self.L = []; self.nl = 0; self.thr = thr; self.stamps = stamps; self.nst = 0; self.nt_w = nt_w
    def __call__(self, s):
        for line in s.split("\n"):
            line = line.strip()
            if line: self.L.append(line)
    def lab(self, p="L"):
        self.nl += 1; return f"{p}_{self.nl}"
    def srd(self, d, b, n):
        self(f"s_mov_b32 s{d}, s{b}\ns_mov_b32 s{d+1}, s{b+1}\ns_mov_b32 s{d+2}, {n}\ns_mov_b32 s{d+3}, 0x20000")
    def stamp(self, i):
        if self.stamps or (self.probe and i in (0, self.probe[0])): self(f"s_memrealtime s[{70+2*i}:{71+2*i}]")
    def dump_stamps(self, n):
        if not self.stamps: return
        A = self
        A("s_waitcnt lgkmcnt(0)\ns_mov_b64 exec, -1")
        A(f"s_mov_b32 s64, s28\ns_mov_b32 s65, s29\ns_mov_b32 s66, 0x10000000\ns_mov_b32 s67, 0x20000")
        A(f"s_lshl_b32 s68, s2, 3\ns_add_u32 s68, s68, s3\ns_lshl_b32 s68, s68, 6\ns_add_u32 s68, s68, {STAMP}")
        for i in range(n): A(f"v_writelane_b32 v250, s{70+2*i}, {i}")
        A(f"v_lshlrev_b32 v251, 2, v0\ns_mov_b64 exec, {(1<<n)-1}\nbuffer_store_dword v250, v251, s[64:67], s68 offen")

    def build(self):
        A = self; thr = self.thr
        A(f"s_cmp_ge_u32 s2, 256\ns_cbranch_scc1 L_end")
        A.stamp(0)
        A("s_load_dwordx16 s[4:19], s[0:1], 0\ns_load_dwordx8 s[20:27], s[0:1], 64\ns_load_dwordx2 s[28:29], s[0:1], 96")
        if self.dbg: A("s_memrealtime s[96:97]")
        for i in range(self.sleep): A("s_sleep 37")
        if self.pf: A("s_getpc_b64 s[38:39]\nv_lshlrev_b32 v1, 5, v0\nglobal_load_dword v255, v1, s[38:39]")
        A("v_lshrrev_b32 v1, 6, v0\nv_and_b32 v0, 63, v0\nv_readfirstlane_b32 s3, v1")
        A("s_and_b32 s30, s2, 7\ns_lshr_b32 s31, s2, 3")
        A(f"v_lshlrev_b32 v2, 4, v0")
        A("s_cmp_lg_u32 s3, 0\ns_cbranch_scc0 L_loader\ns_barrier\ns_branch L_compute")
        self.loader()
        self.compute()
        A("L_end:\ns_endpgm")

    def loader(self):
        A = self; thr = self.thr; W = thr - 4
        nt = " nt" if self.nt_kv else ""; ntw = " nt" if self.nt_w else ""
        A("L_loader:\ns_setprio 3")
        A(f"v_mov_b32 v4, 0\nv_mov_b32 v5, 0\nv_mov_b32 v6, 0\nv_mov_b32 v7, 0\nv_add_u32 v3, {MISC}, v2\nds_write_b128 v3, v[4:7]")
        A("s_lshl_b32 s33, s30, 4\ns_add_u32 s33, s33, s31")
        A("s_lshr_b32 s35, s30, 1\ns_mul_i32 s35, s35, 14\ns_add_u32 s35, s35, s31\ns_sub_u32 s35, s35, 16")
        A("s_movk_i32 s32, 0x2000\ns_mov_b32 s34, 0x400000\ns_cmp_lt_u32 s31, 16")
        A(f"s_cselect_b32 s33, s33, s35\ns_cselect_b32 s32, s32, 3584\ns_cselect_b32 s34, s34, {1792*1024}\ns_lshl_b32 s33, s33, 6")
        A("s_cmp_lt_u32 s31, 30\ns_cselect_b32 s34, s34, 0")
        A("v_lshrrev_b32 v12, 2, v0\nv_mul_lo_u32 v8, v12, s32\nv_lshrrev_b32 v12, 4, v0\nv_and_b32 v13, 2, v12\nv_and_b32 v14, 3, v0\nv_xor_b32 v13, v13, v14\nv_lshl_add_u32 v8, v13, 4, v8")
        A("s_lshl_b32 s36, s32, 4\ns_sub_u32 s36, s36, 1024\nv_add_u32 v9, s36, v8\nv_add_u32 v10, s36, v9\nv_add_u32 v11, s36, v10")
        A(f"v_lshlrev_b32 v3, 2, v0\nv_add_u32 v3, {MISC}, v3\nv_mov_b32 v4, {9 - W}")
        A("s_waitcnt lgkmcnt(0)\ns_barrier")
        A.srd(40, 4, 8192)
        for b in range(8):
            A(f"s_mov_b32 m0, {XOFF + b*32 + (b//4)*4096}" + ("\ns_movk_i32 s37, 0x1000" if b == 0 else ""))
            A(f"buffer_load_dwordx4 v2, s[40:43], {'s37' if b >= 4 else '0'} offen offset:{(b%4)*1024} lds")
        A.srd(44, 22, 1024)
        A(f"s_mov_b32 m0, {GWOFF}\ns_bitcmp1_b32 s30, 0\nbuffer_load_dwordx4 v2, s[44:47], 0 offen lds")
        A("s_cselect_b32 s44, s18, s16\ns_cselect_b32 s45, s19, s17\ns_cmp_lt_u32 s31, 16\ns_cselect_b32 s44, s10, s44\ns_cselect_b32 s45, s11, s45\ns_mov_b32 s46, s34")
        def loop(srd, voffs, niter, m0base, sreg, step, flags):
            l = A.lab("L_ld")
            A(f"s_mov_b32 s37, {m0base}")
            A(f"{l}:\ns_waitcnt vmcnt({W})\nds_write_b32 v3, v4 offset:{F_PROG}\ns_mov_b32 m0, s37\ns_add_u32 s37, s37, 4096")
            for j in range(4):
                A(f"buffer_load_dwordx4 v{voffs[j]}, s[{srd}:{srd+3}], s{sreg} offen offset:{j*1024}{flags} lds")
            A(f"v_add_u32 v4, 4, v4\ns_add_u32 s{sreg}, s{sreg}, {step}\ns_cmp_lt_u32 s37, {m0base + niter*4096}\ns_cbranch_scc1 {l}")
        A("s_lshl_b32 s36, s32, 6")
        A.stamp(1)
        loop(44, [8, 9, 10, 11], 8, TOFF, 33, "s36", ntw)
        A.stamp(2)
        A.srd(40, 6, 0x4000000)
        A("s_lshr_b32 s32, s31, 2\ns_lshl_b32 s32, s32, 3\ns_add_u32 s32, s32, s30\ns_lshl_b32 s32, s32, 20\ns_and_b32 s33, s31, 3\ns_lshl_b32 s33, s33, 16\ns_add_u32 s32, s32, s33\ns_add_u32 s32, s32, 0xC0000\ns_mov_b32 s33, s32")
        A("v_and_b32 v13, 15, v0\nv_lshlrev_b32 v14, 8, v12")
        for j in range(4):
            A(f"v_add_u32 v15, {4*j}, v12\nv_xor_b32 v15, v15, v13\nv_lshl_add_u32 v{8+j}, v15, 4, v14")
        loop(40, [8, 9, 10, 11], 16, KOFF, 33, 4096, nt)
        A.stamp(3)
        A.srd(44, 8, 0x4000000)
        for j in range(2):
            A(f"v_add_u32 v15, {4*j}, v12\nv_lshlrev_b32 v15, 1, v15\nv_xor_b32 v15, v15, v13\nv_lshl_add_u32 v{8+j}, v15, 4, v14")
        loop(44, [8, 9, 8, 9], 8, VOFF, 32, 4096, nt)
        l = A.lab("L_ws")
        A(f"{l}:\nds_read_b32 v5, v3 offset:{F_S}\ns_waitcnt lgkmcnt(0)\nv_readfirstlane_b32 s37, v5\ns_cmp_ge_u32 s37, 3\ns_cbranch_scc0 {l}")
        loop(44, [8, 9, 8, 9], 8, VOFF + 32768, 32, 4096, nt)
        A.stamp(4)
        A.srd(40, 12, 0x400000)
        A.srd(44, 20, 1792*1024)
        A("s_lshl_b32 s32, s30, 2\ns_and_b32 s33, s31, 3\ns_add_u32 s32, s32, s33\ns_lshr_b32 s33, s31, 2\ns_lshl_b32 s33, s33, 7")
        A(f"s_mul_i32 s34, s32, {56*1024}\ns_add_u32 s34, s34, s33\ns_lshl_b32 s32, s32, 17\ns_add_u32 s32, s32, s33")
        A("v_lshrrev_b32 v14, 3, v0\nv_lshlrev_b32 v14, 10, v14\nv_and_b32 v13, 7, v0\nv_and_b32 v15, 1, v12\nv_lshlrev_b32 v15, 1, v15\nv_xor_b32 v13, v13, v15")
        A("v_lshl_add_u32 v8, v13, 4, v14\nv_xor_b32 v9, 64, v8\nv_add_u32 v9, 7168, v9\nv_add_u32 v10, 14336, v8\nv_add_u32 v11, 14336, v9")
        loop(40, [8, 9, 10, 11], 4, WOFF, 32, 32768, ntw)
        loop(44, [8, 9, 10, 11], 2, W2OFF, 34, 32768, ntw)
        A.stamp(5)
        w = W
        while True:
            A(f"s_waitcnt vmcnt({w})\nds_write_b32 v3, v4 offset:{F_PROG}")
            if w == 0: break
            nw = max(0, min(w - 4, N_W) if w > N_W else 0)
            A(f"v_add_u32 v4, {w - nw}, v4")
            w = nw
        A.stamp(6)
        A.dump_stamps(7)
        A("s_endpgm")

    def wait_prog(self, n):
        A = self; l = A.lab("L_wp"); d = A.lab("L_wd")
        A(f"s_cmp_ge_i32 s50, {n}\ns_cbranch_scc1 {d}")
        A(f"{l}:\nds_read_b32 v10, v3 offset:{F_PROG}\ns_waitcnt lgkmcnt(0)\nv_readfirstlane_b32 s50, v10\ns_cmp_ge_i32 s50, {n}\ns_cbranch_scc0 {l}\n{d}:")
    def signal(self, off):
        self(f"s_waitcnt lgkmcnt(0)\nds_add_u32 v3, v9 offset:{off}")
    def wait_cnt(self, off, n):
        A = self; l = A.lab("L_wc")
        A(f"{l}:\nds_read_b32 v10, v3 offset:{off}\ns_waitcnt lgkmcnt(0)\nv_readfirstlane_b32 s51, v10\ns_cmp_ge_u32 s51, {n}\ns_cbranch_scc0 {l}")
    def poll(self, loads):
        A = self; l = A.lab("L_pl"); d = A.lab("L_pd")
        A(f"s_mov_b32 s52, 0\n{l}:")
        for (r, va, so, imm) in loads:
            A(f"buffer_load_dwordx4 v[{r}:{r+3}], v{va}, s[40:43], {so} offen offset:{imm} sc1")
        A(f"s_add_u32 s52, s52, 1")
        n = len(loads)
        for i, (r, va, so, imm) in enumerate(loads):
            A(f"s_waitcnt vmcnt({n-1-i})")
            if i == 0: A(f"v_cmp_ne_u64 s[54:55], s[48:49], v[{r+2}:{r+3}]")
            else: A(f"v_cmp_ne_u64 vcc, s[48:49], v[{r+2}:{r+3}]\ns_or_b64 s[54:55], s[54:55], vcc")
        A(f"s_cmp_eq_u64 s[54:55], 0\ns_cbranch_scc1 {d}\ns_cmp_lt_u32 s52, {POLL_MAX}\ns_cbranch_scc1 {l}\n{d}:")
    def xlane(self, op, v, t, steps):
        A = self
        for s in steps:
            A(f"v_mov_b32 v{t}, v{v}\nv_permlane{s}_swap_b32 v{v}, v{t}\n{op} v{v}, v{v}, v{t}")

    def compute(self):
        A = self
        mf = "v_mfma_f32_16x16x32_bf16"
        A("L_compute:")
        A("s_sub_u32 s3, s3, 1\ns_mov_b32 s50, 0")
        A("s_lshr_b32 s32, s31, 2\ns_and_b32 s33, s31, 3\ns_lshl_b32 s35, s30, 2\ns_add_u32 s35, s35, s33")
        A(f"v_lshlrev_b32 v3, 2, v0\nv_add_u32 v3, {MISC}, v3\nv_mov_b32 v9, 1")
        A("v_and_b32 v4, 15, v0\nv_lshrrev_b32 v5, 4, v0\nv_and_b32 v6, 3, v0\nv_bfe_u32 v7, v0, 2, 2\nv_and_b32 v8, 7, v0")
        A("s_waitcnt lgkmcnt(0)")
        A("s_load_dwordx2 s[48:49], s[28:29], 0")
        A.srd(40, 28, WS_SIZE)
        A(f"v_mul_u32_u24 v11, {XROW}, v8\nv_lshl_add_u32 v11, v5, 4, v11\nv_add_u32 v11, {XOFF}, v11")
        A("v_lshl_add_u32 v12, v5, 3, v7\nv_lshlrev_b32 v12, 6, v12\nv_lshrrev_b32 v13, 1, v6\ns_lshl_b32 s36, s3, 1\nv_add_u32 v13, s36, v13")
        A(f"v_and_b32 v14, 1, v5\nv_lshlrev_b32 v14, 1, v14\nv_xor_b32 v13, v13, v14\nv_lshl_add_u32 v12, v13, 4, v12\nv_and_b32 v14, 1, v6\nv_lshl_add_u32 v12, v14, 3, v12\nv_add_u32 v12, {TOFF}, v12")
        A(f"v_lshlrev_b32 v13, 4, v5\nv_add_u32 v13, {GWOFF}, v13")
        A("s_lshl_b32 s36, s30, 4\ns_add_u32 s36, s36, s31")
        A("s_lshr_b32 s37, s30, 1\ns_mul_i32 s37, s37, 14\ns_and_b32 s44, s30, 1\ns_mul_i32 s44, s44, 56\ns_add_u32 s37, s37, s44\ns_add_u32 s37, s37, s31\ns_add_u32 s37, s37, 112")
        A(f"s_cmp_lt_u32 s31, 16\ns_cselect_b32 s36, s36, s37\ns_lshl_b32 s36, s36, 7\ns_lshl_b32 s37, s3, 6\ns_add_u32 s36, s36, s37\ns_add_u32 s36, s36, {WS_S1}")
        A(f"v_mul_u32_u24 v15, {S1ROW}, v8\nv_lshl_add_u32 v15, v5, 4, v15")
        A("s_waitcnt lgkmcnt(0)")
        A(f"s_add_u32 s48, s48, {TAGC_LO:#x}\ns_addc_u32 s49, s49, {TAGC_HI:#x}")
        A.stamp(1)
        A("s_cmp_eq_u32 s3, 3\ns_cbranch_scc1 L_s1done")
        A.wait_prog(P_S1)
        A.stamp(2)
        A("s_cmp_eq_u32 s3, 2\ns_cbranch_scc1 L_logit")
        X0, W0, D = 64, 128, 16
        def rd(ks):
            A(f"ds_read_b128 v[{X0+4*ks}:{X0+4*ks+3}], v11 offset:{ks*64}")
            A(f"ds_read_b64_tr_b16 v[{W0+4*ks}:{W0+4*ks+1}], v12 offset:{ks*2048}")
            A(f"ds_read_b64_tr_b16 v[{W0+4*ks+2}:{W0+4*ks+3}], v12 offset:{ks*2048+256}")
        for ks in range(4): rd(ks)
        for ks in range(16):
            if ks + 4 < 16:
                A("s_waitcnt lgkmcnt(9)")
            else:
                A(f"s_waitcnt lgkmcnt({3*(15-ks)})")
            A(f"{mf} v[{D}:{D+3}], v[{W0+4*ks}:{W0+4*ks+3}], v[{X0+4*ks}:{X0+4*ks+3}], {'0' if ks == 0 else f'v[{D}:{D+3}]'}")
            if ks + 4 < 16: rd(ks + 4)
        A(f"ds_add_u32 v3, v9 offset:{F_S}")
        A(f"v_mov_b32 v22, s48\nv_mov_b32 v23, s49\ns_cmp_ge_u32 s31, 30\ns_cbranch_scc1 L_s1done")
        A(f"v_cvt_pk_bf16_f32 v20, v{D}, v{D+1}\nv_cvt_pk_bf16_f32 v21, v{D+2}, v{D+3}")
        A("s_mov_b32 exec_lo, 0x00ff00ff\ns_mov_b32 exec_hi, 0x00ff00ff\nbuffer_store_dwordx4 v[20:23], v15, s[40:43], s36 offen sc1\ns_mov_b64 exec, -1\ns_branch L_s1done")
        A("L_logit:")
        for ks in range(16):
            A(f"ds_read_b128 v[{X0+4*ks}:{X0+4*ks+3}], v11 offset:{ks*64}\nds_read_b128 v[{W0+4*ks}:{W0+4*ks+3}], v13 offset:{ks*64}")
        A("s_waitcnt lgkmcnt(0)")
        A(f"ds_add_u32 v3, v9 offset:{F_S}")
        for ks in range(16):
            A(f"{mf} v[{D}:{D+3}], v[{W0+4*ks}:{W0+4*ks+3}], v[{X0+4*ks}:{X0+4*ks+3}], {'0' if ks == 0 else f'v[{D}:{D+3}]'}")
        A(f"v_lshlrev_b32 v20, 2, v4\nv_add_u32 v20, {MISC}, v20")
        A(f"v_mul_f32 v21, {f32(-LOG2E)}, v{D}\nv_exp_f32 v21, v21\nv_add_f32 v21, 1.0, v21\nv_rcp_f32 v21, v21")
        A(f"s_mov_b64 exec, 0xffff\nds_write_b32 v20, v21 offset:{M_G}\ns_mov_b64 exec, -1")
        A("L_s1done:")
        A.stamp(3)
        A("v_lshlrev_b32 v11, 5, v6\nv_lshl_add_u32 v11, v7, 3, v11\nv_lshl_add_u32 v11, v5, 1, v11\nv_lshlrev_b32 v11, 4, v11")
        A(f"s_mul_i32 s36, s32, {S1ROW}\ns_lshl_b32 s37, s30, 11\ns_add_u32 s36, s36, s37\ns_add_u32 s36, s36, {WS_S1}")
        A(f"v_and_b32 v13, 1, v5\nv_mul_u32_u24 v12, {S1ROW}, v13\nv_min_u32 v14, 13, v4\nv_lshl_add_u32 v12, v14, 4, v12")
        A(f"s_mul_i32 s37, s3, {2*S1ROW}\ns_mul_i32 s44, s35, 224\ns_add_u32 s37, s37, s44\ns_add_u32 s37, s37, {WS_S1 + 16384}\ns_add_u32 s44, s37, 7168")
        A(f"s_mul_i32 s45, s3, {2*HROW}\ns_add_u32 s45, s45, {MISC + M_H}\nv_mul_u32_u24 v14, {HROW}, v13\nv_lshl_add_u32 v14, v4, 3, v14\nv_add_u32 v14, s45, v14")
        A("s_lshl_b32 s45, s3, 14\nv_lshlrev_b32 v15, 8, v4\nv_add_u32 v15, s45, v15")
        for ks in range(4):
            A(f"v_add_u32 v20, {4*ks}, v5\nv_xor_b32 v20, v20, v4\nv_lshl_add_u32 v{24+ks}, v20, 4, v15")
        A(f"s_lshl_b32 s45, s3, 4\ns_add_u32 s45, s45, {P_K0 + 16}")
        A.poll([(28, 11, "s36", 0), (32, 11, "s36", 16), (36, 12, "s37", 0), (40, 12, "s44", 0)])
        A.stamp(4)
        for ks in range(4):
            for j, src in enumerate((28, 29, 32, 33)):
                if ks == 0: A(f"v_mov_b32 v{44+j}, v{src}")
                else: A(f"v_mov_b32_dpp v{44+4*ks+j}, v{src} row_shl:{4*ks} row_mask:0xf bank_mask:0xf bound_ctrl:1")
        A("v_lshlrev_b32 v16, 16, v36\nv_and_b32 v17, 0xffff0000, v36\nv_lshlrev_b32 v18, 16, v37\nv_and_b32 v19, 0xffff0000, v37")
        A("v_lshlrev_b32 v20, 16, v40\nv_and_b32 v21, 0xffff0000, v40\nv_lshlrev_b32 v22, 16, v41\nv_and_b32 v23, 0xffff0000, v41")
        for i in range(4): A(f"v_mul_f32 v{28+i}, {f32(-LOG2E)}, v{16+i}")
        for i in range(4): A(f"v_exp_f32 v{28+i}, v{28+i}")
        for i in range(4): A(f"v_add_f32 v{28+i}, 1.0, v{28+i}")
        for i in range(4): A(f"v_rcp_f32 v{28+i}, v{28+i}")
        for i in range(4): A(f"v_mul_f32 v{16+i}, v{16+i}, v{28+i}")
        for i in range(4): A(f"v_mul_f32 v{16+i}, v{16+i}, v{20+i}")
        A("v_cvt_pk_bf16_f32 v16, v16, v17\nv_cvt_pk_bf16_f32 v17, v18, v19\nv_cmp_gt_u32 vcc, 14, v4\nv_cndmask_b32 v16, 0, v16, vcc\nv_cndmask_b32 v17, 0, v17, vcc")
        A("s_mov_b32 exec_hi, 0\nds_write_b64 v14, v[16:17]\ns_mov_b64 exec, -1")
        A.wait_prog("s45")
        A.stamp(5)
        KF, S = 64, 28
        for t in range(4):
            for ks in range(4):
                A(f"ds_read_b128 v[{KF+16*t+4*ks}:{KF+16*t+4*ks+3}], v{24+ks} offset:{t*4096}")
        for t in range(4):
            A(f"s_waitcnt lgkmcnt({12-4*t})")
            for ks in range(4):
                A(f"{mf} v[{S+4*t}:{S+4*t+3}], v[{KF+16*t+4*ks}:{KF+16*t+4*ks+3}], v[{44+4*ks}:{44+4*ks+3}], {'0' if ks == 0 else f'v[{S+4*t}:{S+4*t+3}]'}")
        A(f"v_lshlrev_b32 v11, 4, v6\nv_add_u32 v11, {MISC}, v11\nv_lshl_add_u32 v12, v5, 6, v11\ns_lshl_b32 s45, s3, 2\nv_add_u32 v13, s45, v11\ns_lshl_b32 s45, s3, 9\nv_add_u32 v14, s45, v12")
        A(f"v_max3_f32 v16, v{S}, v{S+1}, v{S+2}")
        for i in range(3, 15, 2): A(f"v_max3_f32 v16, v16, v{S+i}, v{S+i+1}")
        A(f"v_max_f32 v16, v16, v{S+15}")
        A.xlane("v_max_f32", 16, 17, (16, 32))
        A(f"s_mov_b64 exec, 0xf\nds_write_b32 v13, v16 offset:{M_MAX}\ns_mov_b64 exec, -1")
        A.signal(F_M)
        A.wait_cnt(F_M, 4)
        A(f"ds_read_b128 v[16:19], v11 offset:{M_MAX}\ns_mov_b32 s45, {f32(CSC)}\ns_waitcnt lgkmcnt(0)")
        A("v_max3_f32 v16, v16, v17, v18\nv_max_f32 v16, v16, v19\nv_mul_f32 v60, s45, v16")
        for i in range(16): A(f"v_fma_f32 v{S+i}, v{S+i}, s45, -v60")
        for i in range(16): A(f"v_exp_f32 v{S+i}, v{S+i}")
        A(f"v_add_f32 v16, v{S}, v{S+1}")
        for i in range(2, 16): A(f"v_add_f32 v16, v16, v{S+i}")
        for i in range(8): A(f"v_cvt_pk_bf16_f32 v{44+i}, v{S+2*i}, v{S+2*i+1}")
        A.xlane("v_add_f32", 16, 17, (16, 32))
        A(f"s_mov_b32 exec_lo, 0x000f000f\ns_mov_b32 exec_hi, 0x000f000f\nds_write_b128 v14, v[44:47] offset:{M_P}\nds_write_b128 v14, v[48:51] offset:{M_P+256}")
        A(f"s_mov_b64 exec, 0xf\nds_write_b32 v13, v16 offset:{M_SUM}\ns_mov_b64 exec, -1")
        A.signal(F_P)
        A("v_and_b32 v16, 1, v5\nv_lshl_add_u32 v16, v16, 2, v7\nv_lshlrev_b32 v16, 1, v16\nv_lshrrev_b32 v17, 1, v6\ns_lshl_b32 s45, s3, 2\nv_add_u32 v17, s45, v17")
        A(f"v_lshl_add_u32 v18, v5, 2, v7\nv_lshlrev_b32 v18, 8, v18\nv_and_b32 v19, 1, v6\nv_lshl_add_u32 v18, v19, 3, v18\nv_add_u32 v18, {VOFF}, v18")
        A("v_xor_b32 v19, v17, v16\nv_lshl_add_u32 v24, v19, 4, v18\nv_add_u32 v17, 2, v17\nv_xor_b32 v19, v17, v16\nv_lshl_add_u32 v25, v19, 4, v18")
        A("v_lshlrev_b32 v26, 14, v6\nv_lshl_add_u32 v26, v7, 6, v26\nv_lshl_add_u32 v26, v5, 4, v26\nv_lshlrev_b32 v27, 9, v6")
        A(f"s_lshl_b32 s36, s30, 16\ns_lshl_b32 s37, s31, 9\ns_add_u32 s36, s36, s37\ns_lshl_b32 s37, s3, 7\ns_add_u32 s36, s36, s37\ns_add_u32 s36, s36, {WS_OA}")
        A(f"s_lshl_b32 s37, s30, 11\ns_lshl_b32 s44, s31, 4\ns_add_u32 s37, s37, s44\ns_add_u32 s37, s37, {WS_LA}")
        A.wait_cnt(F_P, 4)
        PR = 128
        for j in range(8): A(f"ds_read_b128 v[{PR+4*j}:{PR+4*j+3}], v12 offset:{M_P + j*256}")
        A(f"ds_read_b128 v[16:19], v11 offset:{M_SUM}\ns_waitcnt lgkmcnt(0)")
        A("v_add_f32 v16, v16, v17\nv_add_f32 v18, v18, v19\nv_add_f32 v16, v16, v18\nv_rcp_f32 v61, v16\nv_log_f32 v16, v16\nv_mov_b32 v21, 0\nv_mov_b32 v22, s48\nv_mov_b32 v23, s49\nv_add_f32 v20, v16, v60")
        A("s_cmp_lg_u32 s3, 0\ns_cbranch_scc1 L_nolse\ns_mov_b64 exec, 0xf\nbuffer_store_dwordx4 v[20:23], v27, s[40:43], s37 offen sc1\ns_mov_b64 exec, -1\nL_nolse:")
        A.stamp(6)
        A("v_lshrrev_b32 v16, 5, v0\nv_and_b32 v17, 31, v0\nv_lshlrev_b32 v11, 11, v16\nv_lshl_add_u32 v11, v17, 4, v11\nv_lshlrev_b32 v12, 6, v16\nv_lshl_add_u32 v12, v6, 4, v12")
        A(f"s_lshl_b32 s46, s35, 3\ns_lshl_b32 s47, s3, 1\ns_add_u32 s46, s46, s47\ns_lshl_b32 s44, s46, 11\ns_add_u32 s44, s44, {WS_OA}\ns_lshl_b32 s45, s46, 6\ns_add_u32 s45, s45, {WS_LA}")
        A(f"v_add_u32 v16, s47, v16\nv_mul_u32_u24 v13, {OROW}, v16\nv_lshl_add_u32 v13, v17, 3, v13\nv_add_u32 v13, {MISC + M_O}, v13")
        A("v_lshl_add_u32 v16, v5, 3, v7\nv_lshlrev_b32 v16, 7, v16\nv_lshrrev_b32 v17, 1, v7\nv_and_b32 v18, 1, v5\nv_lshl_add_u32 v17, v18, 1, v17\nv_lshlrev_b32 v17, 1, v17")
        A(f"v_lshrrev_b32 v18, 1, v6\nv_add_u32 v18, s47, v18\nv_xor_b32 v17, v17, v18\nv_lshl_add_u32 v16, v17, 4, v16\nv_and_b32 v18, 1, v6\nv_lshl_add_u32 v16, v18, 3, v16\nv_add_u32 v14, {WOFF}, v16")
        A(f"v_mul_u32_u24 v15, {OROW}, v8\nv_lshl_add_u32 v15, v5, 4, v15\nv_add_u32 v15, {MISC + M_O}, v15")
        A(f"v_mul_u32_u24 v62, {HROW}, v8\nv_lshl_add_u32 v62, v5, 4, v62\nv_add_u32 v62, {MISC + M_H}, v62\nv_lshlrev_b32 v63, 2, v4\nv_add_u32 v63, {MISC}, v63")
        A(f"ds_read_b128 v[160:163], v62\nds_read_b128 v[164:167], v62 offset:64\nds_read_b32 v63, v63 offset:{M_G}")
        A("v_lshlrev_b32 v62, 14, v8\nv_lshl_add_u32 v62, v5, 5, v62\nv_lshrrev_b32 v16, 3, v4\nv_lshl_add_u32 v62, v16, 4, v62")
        A(f"s_lshl_b32 s46, s32, 17\ns_lshl_b32 s47, s3, 12\ns_add_u32 s46, s46, s47\ns_lshl_b32 s47, s35, 7\ns_add_u32 s46, s46, s47\ns_add_u32 s46, s46, {WS_FA}")
        VF, O = 64, 28
        for j in range(8):
            A.wait_prog(P_V0 + 8 * (j + 1))
            for t in range(2):
                for hf in range(2):
                    r = VF + 8*j + 4*t + 2*hf
                    A(f"ds_read_b64_tr_b16 v[{r}:{r+1}], v{24+t} offset:{j*8192 + hf*4096}")
            for t in range(2):
                r = VF + 8*j + 4*t
                A(f"s_waitcnt lgkmcnt({2-2*t})\n{mf} v[{O+4*t}:{O+4*t+3}], v[{r}:{r+3}], v[{PR+4*j}:{PR+4*j+3}], {'0' if j == 0 else f'v[{O+4*t}:{O+4*t+3}]'}")
        A.stamp(7)
        A("v_cmp_eq_u32 vcc, 0, v7")
        for i in range(4): A(f"v_cndmask_b32 v{16+i}, v{O+4+i}, v{O+i}, vcc")
        for i in range(4): A(f"v_mul_f32 v{16+i}, v{16+i}, v61")
        A("v_cvt_pk_bf16_f32 v20, v16, v17\nv_cvt_pk_bf16_f32 v21, v18, v19")
        A("s_mov_b32 exec_lo, 0x00ff00ff\ns_mov_b32 exec_hi, 0x00ff00ff\nbuffer_store_dwordx4 v[20:23], v26, s[40:43], s36 offen sc1\ns_mov_b64 exec, -1")
        A.wait_prog(P_ALL)
        A.stamp(8)
        WF = 64
        for ks in (4, 5, 0, 1, 2, 3):
            for hf in range(2):
                r = WF + 4*ks + 2*hf
                A(f"ds_read_b64_tr_b16 v[{r}:{r+1}], v14 offset:{ks*4096 + hf*512}")
        A(f"s_waitcnt lgkmcnt(8)\n{mf} v[56:59], v[{WF+16}:{WF+19}], v[160:163], 0\n{mf} v[56:59], v[{WF+20}:{WF+23}], v[164:167], v[56:59]")
        A.poll([(28, 12, "s45", 0), (32, 11, "s44", 0), (36, 11, "s44", 512), (40, 11, "s44", 1024), (44, 11, "s44", 1536)])
        A.stamp(9)
        for s in range(4): A(f"v_mov_b32_dpp v{16+s}, v28 quad_perm:[{s},{s},{s},{s}] row_mask:0xf bank_mask:0xf")
        A("v_max3_f32 v24, v16, v17, v18\nv_max_f32 v24, v24, v19")
        for s in range(4): A(f"v_sub_f32 v{16+s}, v{16+s}, v24")
        for s in range(4): A(f"v_exp_f32 v{16+s}, v{16+s}")
        for s in range(4):
            r = 32 + 4*s
            A(f"v_and_b32 v{r+3}, 0xffff0000, v{r+1}\nv_lshlrev_b32 v{r+2}, 16, v{r+1}\nv_and_b32 v{r+1}, 0xffff0000, v{r}\nv_lshlrev_b32 v{r}, 16, v{r}")
        A("v_add_f32 v24, v16, v17\nv_add_f32 v25, v18, v19\nv_add_f32 v24, v24, v25\nv_rcp_f32 v24, v24")
        for i in range(4): A(f"v_mul_f32 v{28+i}, v16, v{32+i}")
        for s in range(1, 4):
            for i in range(4): A(f"v_fmac_f32 v{28+i}, v{16+s}, v{32+4*s+i}")
        for i in range(4): A(f"v_mul_f32 v{28+i}, v{28+i}, v24")
        A("v_cvt_pk_bf16_f32 v28, v28, v29\nv_cvt_pk_bf16_f32 v29, v30, v31\nds_write_b64 v13, v[28:29]\ns_waitcnt lgkmcnt(0)\ns_barrier")
        for ks in range(4): A(f"ds_read_b128 v[{32+4*ks}:{35+4*ks}], v15 offset:{ks*64}")
        A("v_cmp_gt_u32 vcc, 8, v4")
        for ks in range(4):
            A(f"s_waitcnt lgkmcnt({3-ks})\n{mf} v[28:31], v[{WF+4*ks}:{WF+4*ks+3}], v[{32+4*ks}:{35+4*ks}], {'0' if ks == 0 else 'v[28:31]'}")
        A("v_cndmask_b32 v16, v58, v56, vcc\nv_cndmask_b32 v17, v59, v57, vcc")
        A("v_cndmask_b32 v18, v30, v28, vcc\nv_cndmask_b32 v19, v31, v29, vcc")
        A("v_sub_f32 v18, v18, v16\nv_sub_f32 v19, v19, v17\nv_fma_f32 v20, v63, v18, v16\nv_fma_f32 v21, v63, v19, v17")
        A("buffer_store_dwordx4 v[20:23], v62, s[40:43], s46 offen sc1")
        A.stamp(10)
        A("s_cmp_lg_u32 s3, 0\ns_cbranch_scc1 L_cend")
        A(f"s_lshl_b32 s44, s32, 5\ns_add_u32 s44, s44, s35\ns_lshl_b32 s44, s44, 12\ns_add_u32 s44, s44, {WS_FA}")
        A.srd(56, 24, 8192)
        A("s_lshr_b32 s45, s35, 2\ns_lshl_b32 s45, s45, 10\ns_lshl_b32 s46, s32, 7\ns_add_u32 s45, s45, s46\ns_lshl_b32 s46, s33, 5\ns_add_u32 s45, s45, s46\nv_lshlrev_b32 v11, 2, v0")
        A.poll([(28 + 4*i, 2, "s44", 1024*i) for i in range(4)])
        A.stamp(11)
        A("v_add_f32 v28, v28, v32\nv_add_f32 v29, v29, v33\nv_add_f32 v36, v36, v40\nv_add_f32 v37, v37, v41\nv_add_f32 v28, v28, v36\nv_add_f32 v29, v29, v37")
        A("v_add_f32_dpp v28, v28, v28 row_ror:8 row_mask:0xf bank_mask:0xf\nv_add_f32_dpp v29, v29, v29 row_ror:8 row_mask:0xf bank_mask:0xf")
        for s in (16, 32):
            A(f"v_mov_b32 v30, v28\nv_mov_b32 v31, v29\nv_permlane{s}_swap_b32 v28, v30\nv_permlane{s}_swap_b32 v29, v31\nv_add_f32 v28, v28, v30\nv_add_f32 v29, v29, v31")
        A("v_cvt_pk_bf16_f32 v28, v28, v29\ns_mov_b64 exec, 0xff\nbuffer_store_dword v28, v11, s[56:59], s45 offen")
        A("s_cmp_lg_u32 s2, 0\ns_cbranch_scc1 L_cend\ns_mov_b64 exec, 1\nbuffer_store_dwordx2 v[22:23], v11, s[40:43], 0 offen sc1")
        A("L_cend:")
        if self.probe:
            i, mult, wg = self.probe
            A(f"s_cmp_lg_u32 s3, 0\ns_cbranch_scc1 L_end\ns_cmp_lg_u32 s2, {wg}\ns_cbranch_scc1 L_end\ns_memrealtime s[98:99]\ns_waitcnt lgkmcnt(0)")
            A(f"s_sub_u32 s96, s{98 if i == 12 else 70+2*i}, s70\ns_mul_i32 s96, s96, {mult}\ns_min_u32 s96, s96, 20000")
            A("L_spin:\ns_memrealtime s[94:95]\ns_waitcnt lgkmcnt(0)\ns_sub_u32 s94, s94, s98\ns_cmp_lt_u32 s94, s96\ns_cbranch_scc1 L_spin")
        if self.dbg:
            A("s_cmp_lg_u32 s3, 0\ns_cbranch_scc1 L_end\ns_memrealtime s[98:99]\ns_waitcnt lgkmcnt(0)\ns_not_b32 s96, s96\ns_mov_b64 exec, 1\nv_mov_b32 v1, 0\nv_mov_b32 v4, s96\nv_mov_b32 v5, s98")
            A("global_atomic_umax v1, v4, s[26:27]\nglobal_atomic_umax v1, v5, s[26:27] offset:4")
        if self.stamps:
            A("s_add_u32 s3, s3, 1")
            A.stamp(12)
            A.dump_stamps(13)

    def text(self):
        self.build()
        body = fix(self.L)
        k = NAME + "_kernel"
        out = HEADER + f"; @launch grid=(256,1,1) block=(320,1,1) lds={LDS_BYTES}\n"
        out += f'.amdgcn_target "amdgcn-amd-amdhsa--gfx950"\n.text\n.globl {k}\n.p2align 8\n.type {k},@function\n{k}:\n'
        out += "\n".join(("" if l.endswith(":") else "    ") + l for l in body) + "\n"
        out += f"    .fill ({CODE_PF + 256} - (. - {k})) / 4, 4, 0xbf810000\n"
        out += f'.section .rodata,"a"\n.p2align 6\n.amdhsa_kernel {k}\n  .amdhsa_next_free_vgpr 256\n  .amdhsa_next_free_sgpr 102\n  .amdhsa_accum_offset 256\n'
        out += "  .amdhsa_group_segment_fixed_size 0\n  .amdhsa_kernarg_size 104\n  .amdhsa_user_sgpr_count 2\n  .amdhsa_user_sgpr_kernarg_segment_ptr 1\n  .amdhsa_system_sgpr_workgroup_id_x 1\n.end_amdhsa_kernel\n"
        return out

if __name__ == "__main__":
    import argparse
    ap = argparse.ArgumentParser()
    ap.add_argument("-o", default="cdna_kernels/%s.s" % NAME)
    ap.add_argument("--thr", type=int, default=28)
    ap.add_argument("--stamps", action="store_true")
    ap.add_argument("--opt", default="")
    a = ap.parse_args()
    open(a.o, "w").write(G(thr=a.thr, stamps=a.stamps, **eval("dict(%s)" % a.opt)).text())
```
